```python
import torch

def _softmax(x, axis=-1):
    return torch.softmax(x, dim=axis)
def _gelu(x):
    return torch.nn.functional.gelu(x, approximate="tanh")
def _silu(x):
    return torch.nn.functional.silu(x)
def _sigmoid(x):
    return torch.sigmoid(x)
def _layernorm(x, axis=-1, eps=1e-5):
    m = x.mean(dim=axis, keepdim=True)
    v = x.var(dim=axis, keepdim=True, unbiased=False)
    return (x - m) / torch.sqrt(v + eps)
def _scatter_add(tgt, idx, src, axis=0):
    return tgt.clone().index_add_(axis, idx, src)
def _segment_sum(src, seg, n):
    out = torch.zeros((n,) + src.shape[1:], dtype=src.dtype)
    return out.index_add_(0, seg, src)
def _pad(x, pw):
    flat = tuple(v for pair in reversed(pw) for v in pair)
    return torch.nn.functional.pad(x, flat)

kernel_name = 'recurrent_scan__spectral_fnet__mixer_channel_mlp__prompt'

def setup_inputs():

    _w = (lambda a: (lambda t: t.to(torch.bfloat16) if t.is_floating_point() else t)(torch.as_tensor(a)))
    def _A_setup():
        B, S, D = 1, 2048, 512
        ns = torch.arange(S)[:, None] * torch.arange(S)[None, :]
        nd = torch.arange(D)[:, None] * torch.arange(D)[None, :]
        Ws_re = torch.cos(-2.0 * torch.pi * ns / S).to(float)
        Ws_im = torch.sin(-2.0 * torch.pi * ns / S).to(float)
        Wd_re = torch.cos(-2.0 * torch.pi * nd / D).to(float)
        Wd_im = torch.sin(-2.0 * torch.pi * nd / D).to(float)
        return {
            "x": _w((lambda *s: torch.randn(*s, dtype=torch.bfloat16) * 0.05)(B, S, D)),
            "dft_seq_re": _w(Ws_re),
            "dft_seq_im": _w(Ws_im),
            "dft_hid_re": _w(Wd_re),
            "dft_hid_im": _w(Wd_im),
        }
    _A_in = _A_setup()

    def _B_setup():
        B, S, D, F = 1, 2048, 512, 1376
        return {
            "x": _w((lambda *s: torch.randn(*s, dtype=torch.bfloat16) * 0.05)(B, S, D)),
            "w1": _w((lambda *s: torch.randn(*s, dtype=torch.bfloat16) * 0.8)(D, F) * (D ** -0.5)),
            "b1": _w((lambda *s: torch.randn(*s, dtype=torch.bfloat16) * 0.8)(F)),
            "w2": _w((lambda *s: torch.randn(*s, dtype=torch.bfloat16) * 0.05)(F, D) * (F ** -0.5)),
            "b2": _w((lambda *s: torch.randn(*s, dtype=torch.bfloat16) * 0.05)(D)),
        }
    _B_in = _B_setup()

    return {
        "A_x": _A_in["x"],
        "A_dft_seq_re": _A_in["dft_seq_re"],
        "A_dft_seq_im": _A_in["dft_seq_im"],
        "A_dft_hid_re": _A_in["dft_hid_re"],
        "A_dft_hid_im": _A_in["dft_hid_im"],
        "B_x": _B_in["x"],
        "B_w1": _B_in["w1"],
        "B_b1": _B_in["b1"],
        "B_w2": _B_in["w2"],
        "B_b2": _B_in["b2"],
    }

def reference(A_x, A_dft_seq_re, A_dft_seq_im, A_dft_hid_re, A_dft_hid_im, B_x, B_w1, B_b1, B_w2, B_b2):
    def _A_ref(x, dft_seq_re, dft_seq_im, dft_hid_re, dft_hid_im):
        a = torch.einsum("bsd,ed->bse", x, dft_hid_re)
        b = torch.einsum("bsd,ed->bse", x, dft_hid_im)
        y = torch.einsum("ts,bse->bte", dft_seq_re, a) - torch.einsum("ts,bse->bte", dft_seq_im, b)
        return y

    def _B_ref(x, w1, b1, w2, b2):
        y = _layernorm(x, axis=-1)
        h = _gelu(torch.einsum("bsd,df->bsf", y, w1) + b1)
        return torch.einsum("bsf,fd->bsd", h, w2) + b2

    x = A_x
    xn = _layernorm(x, axis=-1)
    s = _A_ref(xn, A_dft_seq_re, A_dft_seq_im, A_dft_hid_re, A_dft_hid_im)
    g = _silu(_B_ref(xn, B_w1, B_b1, B_w2, B_b2))
    return x + s * g
```

```python
import sys, math

WS_XN   = 0
WS_YB   = 2 << 20
WS_ABT  = 4 << 20
WS_H    = 8 << 20
WS_W1T  = 14 << 20
WS_W2T  = 16 << 20
WS_SIZE = 268435456
HSTR = 2816

class Asm:
    def __init__(self):
        self.lines = []
    def __call__(self, s):
        for l in s.strip().split("\n"):
            self.lines.append("    " + l.strip())
    def label(self, l):
        self.lines.append(l + ":")
    def raw(self, s):
        self.lines.append(s)
    def text(self):
        return "\n".join(self.lines) + "\n"

def srd_from(a, d, lo, hi, size):
    a(f"s_mov_b32 s{d}, s{lo}")
    a(f"s_and_b32 s{d+1}, s{hi}, 0xffff")
    a(f"s_mov_b32 s{d+2}, {size}")
    a(f"s_mov_b32 s{d+3}, 0x20000")

def srd_off(a, d, lo, hi, off, size):
    a(f"s_add_u32 s{d}, s{lo}, {off}")
    a(f"s_addc_u32 s{d+1}, s{hi}, 0")
    a(f"s_and_b32 s{d+1}, s{d+1}, 0xffff")
    a(f"s_mov_b32 s{d+2}, {size}")
    a(f"s_mov_b32 s{d+3}, 0x20000")

def kernel_header(a, name):
    a.raw(f".globl {name}")
    a.raw(".p2align 8")
    a.raw(f".type {name},@function")
    a.label(name)

def kernel_desc(name, vgpr, sgpr):
    acc = (vgpr + 3) // 4 * 4
    return f""".p2align 6
.amdhsa_kernel {name}
  .amdhsa_next_free_vgpr {vgpr}
  .amdhsa_next_free_sgpr {sgpr}
  .amdhsa_accum_offset {acc}
  .amdhsa_group_segment_fixed_size 0
  .amdhsa_kernarg_size 104
  .amdhsa_user_sgpr_count 2
  .amdhsa_user_sgpr_kernarg_segment_ptr 1
  .amdhsa_system_sgpr_workgroup_id_x 1
.end_amdhsa_kernel
"""

DPP = "row_mask:0xf bank_mask:0xf"
def wave_reduce(a, v, t):
    a(f"""
    s_nop 1
    v_add_f32_dpp v{t}, v{v}, v{v} quad_perm:[1,0,3,2] {DPP}
    s_nop 1
    v_add_f32_dpp v{v}, v{t}, v{t} quad_perm:[2,3,0,1] {DPP}
    s_nop 1
    v_add_f32_dpp v{t}, v{v}, v{v} row_half_mirror {DPP}
    s_nop 1
    v_add_f32_dpp v{v}, v{t}, v{t} row_mirror {DPP}
    s_nop 1
    ds_swizzle_b32 v{t}, v{v} offset:0x401F
    s_waitcnt lgkmcnt(0)
    v_add_f32 v{v}, v{v}, v{t}
    v_mov_b32 v{t}, v{v}
    s_nop 1
    v_permlane32_swap_b32 v{v}, v{t}
    s_nop 1
    v_add_f32 v{v}, v{v}, v{t}
    """)

def layernorm8(a, f, p, tmp):
    s, t, mean, q, d, r = tmp[:6]
    a(f"v_add_f32 v{s}, v{f[0]}, v{f[1]}")
    for i in range(2, 8):
        a(f"v_add_f32 v{s}, v{s}, v{f[i]}")
    wave_reduce(a, s, t)
    a(f"v_mul_f32 v{mean}, 0x3b000000, v{s}")
    a(f"v_sub_f32 v{d}, v{f[0]}, v{mean}")
    a(f"v_mul_f32 v{q}, v{d}, v{d}")
    for i in range(1, 8):
        a(f"v_sub_f32 v{d}, v{f[i]}, v{mean}")
        a(f"v_fmac_f32 v{q}, v{d}, v{d}")
    wave_reduce(a, q, t)
    a(f"v_mul_f32 v{q}, 0x3b000000, v{q}")
    a(f"v_cvt_pk_bf16_f32 v{t}, v{mean}, v{q}")
    a(f"v_lshlrev_b32 v{mean}, 16, v{t}")
    a(f"v_and_b32 v{q}, 0xffff0000, v{t}")
    a(f"v_add_f32 v{q}, 0x3727c5ac, v{q}")
    a(f"v_cvt_pk_bf16_f32 v{t}, v{q}, v{q}")
    a(f"v_lshlrev_b32 v{q}, 16, v{t}")
    a(f"v_sqrt_f32 v{q}, v{q}")
    a("s_nop 0")
    a(f"v_cvt_pk_bf16_f32 v{t}, v{q}, v{q}")
    a(f"v_lshlrev_b32 v{q}, 16, v{t}")
    a(f"v_rcp_f32 v{r}, v{q}")
    a("s_nop 0")
    for i in range(0, 8, 2):
        a(f"v_sub_f32 v{f[i]}, v{f[i]}, v{mean}")
        a(f"v_sub_f32 v{f[i+1]}, v{f[i+1]}, v{mean}")
        a(f"v_cvt_pk_bf16_f32 v{t}, v{f[i]}, v{f[i+1]}")
        a(f"v_lshlrev_b32 v{f[i]}, 16, v{t}")
        a(f"v_and_b32 v{f[i+1]}, 0xffff0000, v{t}")
        a(f"v_mul_f32 v{f[i]}, v{f[i]}, v{r}")
        a(f"v_mul_f32 v{f[i+1]}, v{f[i+1]}, v{r}")
        a(f"v_cvt_pk_bf16_f32 v{p[i//2]}, v{f[i]}, v{f[i+1]}")
        a(f"v_lshlrev_b32 v{f[i]}, 16, v{p[i//2]}")
        a(f"v_and_b32 v{f[i+1]}, 0xffff0000, v{p[i//2]}")

def gen_k0(a):
    name = "prep_kernel"
    kernel_header(a, name)
    a("""
    s_load_dwordx2 s[4:5], s[0:1], 0
    s_load_dwordx2 s[6:7], s[0:1], 48
    s_load_dwordx2 s[8:9], s[0:1], 64
    s_load_dwordx2 s[10:11], s[0:1], 96
    v_and_b32 v1, 63, v0
    v_lshrrev_b32 v2, 6, v0
    s_waitcnt lgkmcnt(0)
    """)
    srd_from(a, 12, 10, 11, WS_SIZE)
    a("s_cmp_lt_u32 s2, 512")
    a("s_cbranch_scc1 L0_ln")
    a("s_cmp_lt_u32 s2, 864")
    a("s_cbranch_scc1 L0_w1")
    a("s_cmp_lt_u32 s2, 1216")
    a("s_cbranch_scc1 L0_w2")
    a("s_endpgm")
    a.label("L0_ln")
    srd_from(a, 16, 4, 5, 2048 * 1024)
    a("""
    s_lshl_b32 s3, s2, 2
    v_add_u32 v3, s3, v2            ; row
    v_lshlrev_b32 v4, 10, v3
    v_lshl_add_u32 v4, v1, 4, v4    ; row*1024 + lane*16
    buffer_load_dwordx4 v[8:11], v4, s[16:19], 0 offen
    ; h pad zero: offset = WS_H + row*2816 + 2752 + lane*16 (lanes 0..3)
    s_mov_b32 s20, 2816
    v_mul_lo_u32 v5, v3, s20
    v_lshl_add_u32 v5, v1, 4, v5
    v_add_u32 v5, %d, v5
    v_mov_b32 v6, 0x7ffffff0
    v_cmp_gt_u32 vcc, 4, v1
    s_nop 1
    v_cndmask_b32 v5, v6, v5, vcc
    v_mov_b32 v32, 0
    v_mov_b32 v33, 0
    v_mov_b32 v34, 0
    v_mov_b32 v35, 0
    buffer_store_dwordx4 v[32:35], v5, s[12:15], 0 offen
    s_waitcnt vmcnt(1)
    """ % (WS_H + 2752))
    f = list(range(12, 20))
    for i in range(4):
        a(f"v_lshlrev_b32 v{f[2*i]}, 16, v{8+i}")
        a(f"v_and_b32 v{f[2*i+1]}, 0xffff0000, v{8+i}")
    tmp = list(range(20, 26))
    layernorm8(a, f, [28, 29, 30, 31], tmp)
    a("buffer_store_dwordx4 v[28:31], v4, s[12:15], 0 offen")
    layernorm8(a, f, [36, 37, 38, 39], tmp)
    a(f"v_add_u32 v4, {WS_YB}, v4")
    a("buffer_store_dwordx4 v[36:39], v4, s[12:15], 0 offen")
    a("s_endpgm")
    a.label("L0_w1")
    srd_from(a, 16, 6, 7, 512 * 2752)
    a("""
    s_sub_u32 s3, s2, 512
    s_lshl_b32 s3, s3, 2
    v_add_u32 v3, s3, v2            ; W
    v_and_b32 v4, 63, v3            ; dblk
    v_lshrrev_b32 v5, 6, v3         ; fblk
    v_lshl_add_u32 v5, v5, 6, v1    ; f
    s_mov_b32 s20, 22016            ; 8*2752
    v_mul_lo_u32 v6, v4, s20
    v_lshl_add_u32 v6, v5, 1, v6    ; src offset = dblk*8*2752 + f*2
    s_mov_b32 s21, 2752
    s_mov_b32 s22, 5504
    s_mov_b32 s23, 8256
    s_mov_b32 s24, 11008
    s_mov_b32 s25, 13760
    s_mov_b32 s26, 16512
    s_mov_b32 s27, 19264
    buffer_load_ushort v8, v6, s[16:19], 0 offen
    buffer_load_ushort v16, v6, s[16:19], s21 offen
    buffer_load_ushort v9, v6, s[16:19], s22 offen
    buffer_load_ushort v17, v6, s[16:19], s23 offen
    buffer_load_ushort v10, v6, s[16:19], s24 offen
    buffer_load_ushort v18, v6, s[16:19], s25 offen
    buffer_load_ushort v11, v6, s[16:19], s26 offen
    buffer_load_ushort v19, v6, s[16:19], s27 offen
    v_lshlrev_b32 v7, 10, v5
    v_lshl_add_u32 v7, v4, 4, v7
    v_add_u32 v7, %d, v7
    v_mov_b32 v12, 0x7ffffff0
    v_cmp_gt_u32 vcc, 1376, v5
    s_nop 1
    v_cndmask_b32 v7, v12, v7, vcc
    s_waitcnt vmcnt(0)
    v_lshl_or_b32 v8, v16, 16, v8
    v_lshl_or_b32 v9, v17, 16, v9
    v_lshl_or_b32 v10, v18, 16, v10
    v_lshl_or_b32 v11, v19, 16, v11
    buffer_store_dwordx4 v[8:11], v7, s[12:15], 0 offen
    s_endpgm
    """ % WS_W1T)
    a.label("L0_w2")
    srd_from(a, 16, 8, 9, 1376 * 1024)
    a("""
    s_sub_u32 s3, s2, 864
    s_lshl_b32 s3, s3, 2
    v_add_u32 v3, s3, v2            ; W
    v_and_b32 v4, 7, v3             ; eblk
    v_lshrrev_b32 v5, 3, v3         ; fblk
    v_lshl_add_u32 v4, v4, 6, v1    ; e
    v_lshlrev_b32 v6, 13, v5        ; fblk*8*1024
    v_lshl_add_u32 v6, v4, 1, v6
    buffer_load_ushort v8, v6, s[16:19], 0 offen
    buffer_load_ushort v16, v6, s[16:19], 0 offen offset:1024
    buffer_load_ushort v9, v6, s[16:19], 0 offen offset:2048
    buffer_load_ushort v17, v6, s[16:19], 0 offen offset:3072
    s_mov_b32 s21, 4096
    buffer_load_ushort v10, v6, s[16:19], s21 offen
    buffer_load_ushort v18, v6, s[16:19], s21 offen offset:1024
    buffer_load_ushort v11, v6, s[16:19], s21 offen offset:2048
    buffer_load_ushort v19, v6, s[16:19], s21 offen offset:3072
    s_mov_b32 s20, 2816
    v_mul_lo_u32 v7, v4, s20
    v_lshl_add_u32 v7, v5, 4, v7
    v_add_u32 v7, %d, v7
    s_waitcnt vmcnt(0)
    v_lshl_or_b32 v8, v16, 16, v8
    v_lshl_or_b32 v9, v17, 16, v9
    v_lshl_or_b32 v10, v18, 16, v10
    v_lshl_or_b32 v11, v19, 16, v11
    buffer_store_dwordx4 v[8:11], v7, s[12:15], 0 offen
    s_endpgm
    """ % WS_W2T)
    return name, 40, 32

def frag_pattern(a, dst4, vlane, t0, t1):
    a(f"v_and_b32 v{t0}, 31, v{vlane}")
    a(f"v_lshrrev_b32 v{t1}, 1, v{t0}")
    a(f"v_and_b32 v{t1}, 7, v{t1}")
    a(f"v_lshlrev_b32 v{t0}, 7, v{t0}")
    for kk in range(4):
        d = dst4[kk]
        a(f"v_lshrrev_b32 v{d}, 5, v{vlane}")
        a(f"v_add_u32 v{d}, {2*kk}, v{d}")
        a(f"v_xor_b32 v{d}, v{d}, v{t1}")
        a(f"v_lshl_add_u32 v{d}, v{d}, 4, v{t0}")

def dma_voff(a, dst, vlane, vrow, stride_sgpr, t0, t1):
    a(f"v_lshrrev_b32 v{t0}, 1, v{vrow}")
    a(f"v_and_b32 v{t0}, 7, v{t0}")
    a(f"v_and_b32 v{t1}, 7, v{vlane}")
    a(f"v_xor_b32 v{t0}, v{t0}, v{t1}")
    a(f"v_mul_lo_u32 v{dst}, v{vrow}, s{stride_sgpr}")
    a(f"v_lshl_add_u32 v{dst}, v{t0}, 4, v{dst}")

def bf16_round_pair(a, x0, x1, t):
    a(f"v_cvt_pk_bf16_f32 v{t}, v{x0}, v{x1}")
    a(f"v_lshlrev_b32 v{x0}, 16, v{t}")
    a(f"v_and_b32 v{x1}, 0xffff0000, v{t}")

KA_D = 4
KA_STAGE = 36864
def gen_kA(a):
    name = "gemm1_kernel"
    D = KA_D
    kernel_header(a, name)
    a("""
    s_cmp_ge_u32 s2, 256
    s_cbranch_scc1 LA_end
    s_load_dwordx2 s[4:5], s[0:1], 24      ; Wd_re
    s_load_dwordx2 s[6:7], s[0:1], 32      ; Wd_im
    s_load_dwordx2 s[8:9], s[0:1], 56      ; b1
    s_load_dwordx2 s[10:11], s[0:1], 96    ; ws
    v_and_b32 v1, 63, v0                   ; lane
    v_lshrrev_b32 v2, 6, v0                ; wave
    s_nop 0
    v_readfirstlane_b32 s12, v2
    s_and_b32 s13, s2, 15                  ; sblk
    s_lshr_b32 s14, s2, 4                  ; grp
    s_waitcnt lgkmcnt(0)
    """)
    V_ACC = 16
    V_FR = 96
    V_RW = 144
    V_RA = 160
    V_LA = 176
    V_LW = 180
    V_B1 = 184
    V_OUT = 182
    V_T = 224
    S_SRDW = 32
    S_SRDA = 52
    S_OUT = 56
    S_B1 = 60
    S_KOFF = 64
    S_WB = 65
    S_WB2 = 66
    S_U = 70
    S_CNT = 75
    S_U0 = 76
    S_STR = 77
    t0, t1 = V_T, V_T + 1
    P = [V_T + 2 + i for i in range(4)]
    frag_pattern(a, P, 1, t0, t1)
    a(f"v_lshlrev_b32 v{t0}, 12, v2")
    for sl in range(D):
        for kk in range(4):
            a(f"v_add_u32 v{V_RW + sl*4 + kk}, {sl*KA_STAGE + 16384}, v{P[kk]}")
            a(f"v_add_u32 v{V_RA + sl*4 + kk}, {sl*KA_STAGE}, v{P[kk]}")
            a(f"v_add_u32 v{V_RA + sl*4 + kk}, v{V_RA + sl*4 + kk}, v{t0}")
    a(f"s_mov_b32 s{S_STR}, 1024")
    vrow = V_T + 6
    for j in range(4):
        a(f"v_lshrrev_b32 v{vrow}, 3, v1")
        a(f"v_lshl_add_u32 v{vrow}, v2, 5, v{vrow}")
        a(f"v_add_u32 v{vrow}, {8*j}, v{vrow}")
        dma_voff(a, V_LA + j, 1, vrow, S_STR, t0, t1)
    a(f"v_lshrrev_b32 v{vrow}, 3, v1")
    a(f"v_lshl_add_u32 v{vrow}, v2, 3, v{vrow}")
    dma_voff(a, V_LW, 1, vrow, S_STR, t0, t1)
    a(f"s_lshl_b32 s{S_WB}, s12, 12")
    a(f"s_lshl_b32 s{S_WB2}, s12, 10")
    a(f"s_add_u32 s{S_WB2}, s{S_WB2}, 16384")
    srd_from(a, S_OUT, 10, 11, WS_SIZE)
    a(f"s_mov_b32 s{S_KOFF}, 0")
    a("s_cmp_lt_u32 s14, 7")
    a("s_cbranch_scc0 LA_part2")

    def dma(stage):
        sl = stage % D
        for j in range(4):
            a(f"s_add_u32 m0, s{S_WB}, {sl*KA_STAGE + j*1024}")
            a("s_nop 0")
            a(f"buffer_load_dwordx4 v{V_LA+j}, s[{S_SRDA}:{S_SRDA+3}], s{S_KOFF} offen lds")
        for u in range(5):
            a(f"s_add_u32 m0, s{S_WB2}, {sl*KA_STAGE + u*4096}")
            a("s_nop 0")
            a(f"buffer_load_dwordx4 v{V_LW}, s[{S_SRDW+4*u}:{S_SRDW+4*u+3}], s{S_KOFF} offen lds")
        a(f"s_add_u32 s{S_KOFF}, s{S_KOFF}, 128")

    def reads(g, kk, buf):
        sl = g % D
        base = V_FR + buf * 24
        a(f"ds_read_b128 v[{base}:{base+3}], v{V_RA + sl*4 + kk}")
        for u in range(5):
            a(f"ds_read_b128 v[{base+4+4*u}:{base+7+4*u}], v{V_RW + sl*4 + kk} offset:{u*4096}")

    def mainloop(part, extra_outstanding):
        T = 8
        for s in range(D):
            dma(s)
        a(f"s_waitcnt vmcnt({(D-1)*9})")
        a("s_barrier")
        reads(0, 0, 0)
        for g in range(T):
            for q in range(4):
                idx = g * 4 + q
                cur = idx % 2
                nxt = 1 - cur
                if q < 3:
                    reads(g, q + 1, nxt)
                    a("s_waitcnt lgkmcnt(6)")
                else:
                    a("s_waitcnt lgkmcnt(0)")
                    if g < T - 1:
                        n = (min(g + D - 1, T - 1) - (g + 1)) * 9
                        a(f"s_waitcnt vmcnt({n})")
                        a("s_barrier")
                        if g + D < T:
                            dma(g + D)
                        reads(g + 1, 0, nxt)
                base = V_FR + cur * 24
                for u in range(5):
                    acc = f"v[{V_ACC+16*u}:{V_ACC+16*u+15}]"
                    act = f"v[{base}:{base+3}]"
                    wgt = f"v[{base+4+4*u}:{base+7+4*u}]"
                    c = "0" if idx == 0 else acc
                    if part == 1:
                        a(f"v_mfma_f32_32x32x16_bf16 {acc}, {act}, {wgt}, {c}")
                    else:
                        a(f"v_mfma_f32_32x32x16_bf16 {acc}, {wgt}, {act}, {c}")
        a("s_nop 15")
        a("s_nop 3")

    a(f"""
    s_mul_i32 s{S_U0}, s14, 5
    s_sub_u32 s15, s14, 4
    s_max_i32 s15, s15, 0
    s_sub_u32 s{S_U0}, s{S_U0}, s15
    s_cmp_lt_u32 s14, 4
    s_cselect_b32 s{S_CNT}, 5, 4
    """)
    for u in range(5):
        a(f"s_sub_u32 s15, s{S_CNT}, 1")
        a(f"s_min_u32 s15, s15, {u}")
        a(f"s_add_u32 s{S_U+u}, s{S_U0}, s15")
        a(f"s_cmp_lt_u32 s{S_U+u}, 16")
        a(f"s_cselect_b32 s16, s4, s6")
        a(f"s_cselect_b32 s17, s5, s7")
        a(f"s_and_b32 s15, s{S_U+u}, 15")
        a(f"s_lshl_b32 s15, s15, 15")
        srd_off(a, S_SRDW + 4*u, 16, 17, "s15", 32768)
    a("s_lshl_b32 s15, s13, 17")
    a(f"s_add_u32 s15, s15, {WS_XN}")
    srd_off(a, S_SRDA, 10, 11, "s15", 131072)
    a(f"""
    v_and_b32 v{t0}, 31, v1
    v_lshlrev_b32 v{V_OUT}, 13, v{t0}
    v_lshrrev_b32 v{t0}, 5, v1
    v_lshlrev_b32 v{t0}, 3, v{t0}
    v_lshl_add_u32 v{t0}, v2, 6, v{t0}
    v_add_u32 v{V_OUT}, v{V_OUT}, v{t0}
    s_lshl_b32 s15, s13, 8
    s_add_u32 s15, s15, {WS_ABT}
    v_add_u32 v{V_OUT}, s15, v{V_OUT}
    """)
    mainloop(1, 0)
    for u in range(5):
        if u == 4:
            a(f"s_cmp_lt_u32 s{S_CNT}, 5")
            a("s_cbranch_scc1 LA_end")
        a(f"s_and_b32 s15, s{S_U+u}, 15")
        a(f"s_lshl_b32 s15, s15, 18")
        a(f"s_lshr_b32 s16, s{S_U+u}, 4")
        a(f"s_lshl_b32 s16, s16, 12")
        a(f"s_add_u32 s15, s15, s16")
        for j in range(4):
            r = V_ACC + 16*u + 4*j
            p = V_T + 2*(j % 4)
            a(f"v_cvt_pk_bf16_f32 v{p}, v{r}, v{r+1}")
            a(f"v_cvt_pk_bf16_f32 v{p+1}, v{r+2}, v{r+3}")
            a(f"buffer_store_dwordx2 v[{p}:{p+1}], v{V_OUT}, s[{S_OUT}:{S_OUT+3}], s15 offen offset:{16*j}")
    a("s_endpgm")

    a.label("LA_part2")
    a(f"""
    s_sub_u32 s14, s14, 7
    s_mul_i32 s{S_U0}, s14, 5
    s_sub_u32 s15, s14, 7
    s_max_i32 s15, s15, 0
    s_sub_u32 s{S_U0}, s{S_U0}, s15
    s_cmp_lt_u32 s14, 7
    s_cselect_b32 s{S_CNT}, 5, 4
    """)
    for u in range(5):
        a(f"s_sub_u32 s15, s{S_CNT}, 1")
        a(f"s_min_u32 s15, s15, {u}")
        a(f"s_add_u32 s{S_U+u}, s{S_U0}, s15")
        a(f"s_lshl_b32 s15, s{S_U+u}, 15")
        a(f"s_add_u32 s15, s15, {WS_W1T}")
        srd_off(a, S_SRDW + 4*u, 10, 11, "s15", 32768)
    a("s_lshl_b32 s15, s13, 17")
    a(f"s_add_u32 s15, s15, {WS_YB}")
    srd_off(a, S_SRDA, 10, 11, "s15", 131072)
    srd_from(a, S_B1, 8, 9, 2752)
    a(f"v_lshrrev_b32 v{t0}, 5, v1")
    a(f"v_lshlrev_b32 v{t0}, 3, v{t0}")
    for u in range(5):
        a(f"s_lshl_b32 s15, s{S_U+u}, 6")
        for j in range(4):
            r = V_B1 + 8*u + 2*j
            a(f"buffer_load_dwordx2 v[{r}:{r+1}], v{t0}, s[{S_B1}:{S_B1+3}], s15 offen offset:{16*j}")
    a(f"""
    v_and_b32 v{t1}, 31, v1
    v_lshl_add_u32 v{t1}, v2, 5, v{t1}
    s_lshl_b32 s15, s13, 7
    v_add_u32 v{t1}, s15, v{t1}
    s_mov_b32 s15, {HSTR}
    v_mul_lo_u32 v{V_OUT}, v{t1}, s15
    v_add_u32 v{V_OUT}, v{V_OUT}, v{t0}
    v_add_u32 v{V_OUT}, {WS_H}, v{V_OUT}
    """)
    mainloop(2, 20)
    K0 = -2.0 * math.log2(math.e) * 0.7978845608028654
    K1 = K0 * 0.044715
    import struct
    def f32hex(x): return "0x%08x" % struct.unpack("<I", struct.pack("<f", x))[0]
    a(f"s_mov_b32 s20, {f32hex(K0)}")
    a(f"s_mov_b32 s21, {f32hex(K1)}")
    a(f"v_mov_b32 v{V_T+15}, s20")
    for u in range(5):
        if u == 4:
            a(f"s_cmp_lt_u32 s{S_CNT}, 5")
            a("s_cbranch_scc1 LA_end")
        a(f"s_lshl_b32 s15, s{S_U+u}, 6")
        for j in range(4):
            r = V_ACC + 16*u + 4*j
            bb = V_B1 + 8*u + 2*j
            tt = V_T + 8
            bf16_round_pair(a, r, r+1, tt)
            bf16_round_pair(a, r+2, r+3, tt)
            for i in range(4):
                src = bb + i // 2
                if i % 2 == 0:
                    a(f"v_lshlrev_b32 v{tt}, 16, v{src}")
                else:
                    a(f"v_and_b32 v{tt}, 0xffff0000, v{src}")
                a(f"v_add_f32 v{r+i}, v{r+i}, v{tt}")
            bf16_round_pair(a, r, r+1, tt)
            bf16_round_pair(a, r+2, r+3, tt)
            for i in range(4):
                e = V_T + 10 + i
                a(f"v_mul_f32 v{e}, v{r+i}, v{r+i}")
                a(f"v_fma_f32 v{e}, v{e}, s21, v{V_T+15}")
                a(f"v_mul_f32 v{e}, v{e}, v{r+i}")
                a(f"v_exp_f32 v{e}, v{e}")
            a("s_nop 0")
            for i in range(4):
                e = V_T + 10 + i
                a(f"v_add_f32 v{e}, 1.0, v{e}")
                a(f"v_rcp_f32 v{e}, v{e}")
            a("s_nop 0")
            for i in range(4):
                e = V_T + 10 + i
                a(f"v_mul_f32 v{r+i}, v{r+i}, v{e}")
            p = V_T + 2*(j % 4)
            a(f"v_cvt_pk_bf16_f32 v{p}, v{r}, v{r+1}")
            a(f"v_cvt_pk_bf16_f32 v{p+1}, v{r+2}, v{r+3}")
            a(f"buffer_store_dwordx2 v[{p}:{p+1}], v{V_OUT}, s[{S_OUT}:{S_OUT+3}], s15 offen offset:{16*j}")
    a.label("LA_end")
    a("s_endpgm")
    return name, 240, 96

KB_D = 4
def gen_kB(a):
    name = "gemm2_kernel"
    D = KB_D
    STG = 16384
    kernel_header(a, name)
    a("""
    s_cmp_ge_u32 s2, 256
    s_cbranch_scc1 LB_end
    s_load_dwordx2 s[4:5], s[0:1], 0       ; x
    s_load_dwordx2 s[6:7], s[0:1], 8       ; Ws_re
    s_load_dwordx2 s[8:9], s[0:1], 16      ; Ws_im
    s_load_dwordx2 s[10:11], s[0:1], 72    ; b2
    s_load_dwordx2 s[12:13], s[0:1], 80    ; out
    s_load_dwordx2 s[14:15], s[0:1], 96    ; ws
    v_and_b32 v1, 63, v0                   ; lane
    v_lshrrev_b32 v2, 6, v0                ; wave
    s_nop 0
    v_readfirstlane_b32 s40, v2
    s_and_b32 s41, s2, 7
    s_lshr_b32 s42, s2, 3
    s_and_b32 s43, s42, 3
    s_lshl_b32 s41, s41, 2
    s_add_u32 s41, s41, s43                ; tblk
    s_lshr_b32 s42, s42, 2                 ; eblk
    s_waitcnt lgkmcnt(0)
    """)
    S_A, S_B, S_X, S_B2, S_O = 16, 20, 24, 28, 32
    S_KA, S_KB, S_WB, S_CNT = 44, 45, 46, 47
    V_ACC = 16
    V_FR = 64
    V_RA = 128
    V_RB = 132
    V_LA = 136
    V_LB = 138
    V_LM = 140
    V_X = 144
    V_BB = 152
    V_OUT = 142
    V_T = 160
    t0, t1 = V_T, V_T + 1
    P = [V_T + 2 + i for i in range(4)]
    frag_pattern(a, P, 1, t0, t1)
    a(f"v_and_b32 v{t0}, 1, v2")
    a(f"v_lshlrev_b32 v{t0}, 12, v{t0}")
    a(f"v_lshrrev_b32 v{t1}, 1, v2")
    a(f"v_lshlrev_b32 v{t1}, 12, v{t1}")
    for kk in range(4):
        a(f"v_add_u32 v{V_RA+kk}, v{P[kk]}, v{t0}")
        a(f"v_add_u32 v{V_RB+kk}, v{P[kk]}, v{t1}")
    vrow = V_T + 6
    a("s_mov_b32 s48, 8192")
    a("s_mov_b32 s49, 4096")
    a(f"s_mov_b32 s50, {HSTR}")
    for j in range(2):
        a(f"v_lshrrev_b32 v{vrow}, 3, v1")
        a(f"v_lshl_add_u32 v{vrow}, v2, 4, v{vrow}")
        a(f"v_add_u32 v{vrow}, {8*j}, v{vrow}")
        dma_voff(a, V_LA + j, 1, vrow, 48, t0, t1)
        dma_voff(a, V_LB + j, 1, vrow, 49, t0, t1)
        dma_voff(a, V_LM + j, 1, vrow, 50, t0, t1)
    a(f"s_lshl_b32 s{S_WB}, s40, 11")
    a("s_lshl_b32 s51, s42, 19")
    a(f"s_add_u32 s51, s51, {WS_ABT}")
    srd_off(a, S_A, 14, 15, "s51", 64 * 8192)
    a("s_lshl_b32 s52, s41, 18")
    srd_off(a, S_B, 6, 7, "s52", 64 * 4096)
    srd_from(a, S_X, 4, 5, 2048 * 1024)
    srd_from(a, S_B2, 10, 11, 1024)
    srd_from(a, S_O, 12, 13, 2048 * 1024)
    a(f"s_mov_b32 s{S_KA}, 0")
    a(f"s_mov_b32 s{S_KB}, 0")
    a(f"""
    v_and_b32 v{t0}, 1, v2
    v_lshlrev_b32 v{t0}, 5, v{t0}
    v_lshrrev_b32 v{t1}, 5, v1
    v_lshl_add_u32 v{t0}, v{t1}, 2, v{t0}
    s_lshl_b32 s53, s42, 6
    v_add_u32 v{t0}, s53, v{t0}
    v_lshlrev_b32 v{t0}, 1, v{t0}              ; ecol*2
    v_lshrrev_b32 v{t1}, 1, v2
    v_lshlrev_b32 v{t1}, 5, v{t1}
    v_and_b32 v{V_OUT}, 31, v1
    v_add_u32 v{t1}, v{t1}, v{V_OUT}
    s_lshl_b32 s53, s41, 6
    v_add_u32 v{t1}, s53, v{t1}
    v_lshl_add_u32 v{V_OUT}, v{t1}, 10, v{t0}
    """)
    for j in range(4):
        a(f"buffer_load_dwordx2 v[{V_X+2*j}:{V_X+2*j+1}], v{V_OUT}, s[{S_X}:{S_X+3}], 0 offen offset:{16*j}")
        a(f"buffer_load_dwordx2 v[{V_BB+2*j}:{V_BB+2*j+1}], v{t0}, s[{S_B2}:{S_B2+3}], 0 offen offset:{16*j}")
    for i in range(48):
        a(f"v_mov_b32 v{V_ACC+i}, 0")

    T = 86
    def phase_of(s):
        return 0 if s < 32 else (1 if s < 64 else 2)

    def dma(stage):
        sl = stage % D
        ph = phase_of(stage)
        if stage == 32:
            a("s_lshl_b32 s52, s41, 18")
            srd_off(a, S_B, 8, 9, "s52", 64 * 4096)
            a(f"s_mov_b32 s{S_KB}, 0")
        if stage == 64:
            a(f"s_mul_i32 s51, s42, {64*HSTR}")
            a(f"s_add_u32 s51, s51, {WS_W2T}")
            srd_off(a, S_A, 14, 15, "s51", 64 * HSTR)
            a(f"s_mul_i32 s52, s41, {64*HSTR}")
            a(f"s_add_u32 s52, s52, {WS_H}")
            srd_off(a, S_B, 14, 15, "s52", 64 * HSTR)
            a(f"s_mov_b32 s{S_KA}, 0")
            a(f"s_mov_b32 s{S_KB}, 0")
        va = V_LA if ph < 2 else V_LM
        vb = V_LB if ph < 2 else V_LM
        for j in range(2):
            a(f"s_add_u32 m0, s{S_WB}, {sl*STG + j*1024}")
            a("s_nop 0")
            a(f"buffer_load_dwordx4 v{va+j}, s[{S_A}:{S_A+3}], s{S_KA} offen lds")
        for j in range(2):
            a(f"s_add_u32 m0, s{S_WB}, {sl*STG + 8192 + j*1024}")
            a("s_nop 0")
            a(f"buffer_load_dwordx4 v{vb+j}, s[{S_B}:{S_B+3}], s{S_KB} offen lds")
        a(f"s_add_u32 s{S_KA}, s{S_KA}, 128")
        a(f"s_add_u32 s{S_KB}, s{S_KB}, 128")

    def reads(g):
        sl = g % D
        base = V_FR + (g % 2) * 32
        for kk in range(4):
            a(f"ds_read_b128 v[{base+8*kk}:{base+8*kk+3}], v{V_RA+kk} offset:{sl*STG}")
            a(f"ds_read_b128 v[{base+8*kk+4}:{base+8*kk+7}], v{V_RB+kk} offset:{sl*STG+8192}")

    def sig(g):
        ld = g + D
        ldk = None
        if ld < T:
            ldk = (phase_of(ld), ld in (32, 64))
        n = (min(g + D - 1, T - 1) - (g + 1)) * 4 if g < T - 1 else -1
        return (phase_of(g), ldk, n, g % D, g % 2)

    def step(g):
        a("s_waitcnt lgkmcnt(0)")
        if g < T - 1:
            n = (min(g + D - 1, T - 1) - (g + 1)) * 4
            a(f"s_waitcnt vmcnt({n})")
            a("s_barrier")
            if g + D < T:
                dma(g + D)
            reads(g + 1)
        base = V_FR + (g % 2) * 32
        accb = V_ACC + 16 * phase_of(g)
        acc = f"v[{accb}:{accb+15}]"
        for kk in range(4):
            a(f"v_mfma_f32_32x32x16_bf16 {acc}, v[{base+8*kk}:{base+8*kk+3}], v[{base+8*kk+4}:{base+8*kk+7}], {acc}")

    for s in range(D):
        dma(s)
    a(f"s_waitcnt vmcnt({(D-1)*4})")
    a("s_barrier")
    reads(0)
    Pd = D if D % 2 == 0 else 2 * D
    g = 0
    nl = 0
    while g < T:
        n = 1
        while g + (n + 1) * Pd <= T and all(sig(g + n * Pd + i) == sig(g + i) for i in range(Pd)):
            n += 1
        if n >= 2 and g + Pd <= T:
            a(f"s_mov_b32 s{S_CNT}, {n}")
            a.label(f"LB_loop{nl}")
            for i in range(Pd):
                step(g + i)
            a(f"s_sub_u32 s{S_CNT}, s{S_CNT}, 1")
            a(f"s_cmp_lg_u32 s{S_CNT}, 0")
            a(f"s_cbranch_scc1 LB_loop{nl}")
            nl += 1
            g += n * Pd
        else:
            step(g)
            g += 1
    a("s_nop 15")
    a("s_nop 3")
    LOG2E = "0xbfb8aa3b"
    a(f"s_mov_b32 s20, {LOG2E}")
    tt = V_T
    for j in range(4):
        re = V_ACC + 4*j
        im = V_ACC + 16 + 4*j
        oo = V_ACC + 32 + 4*j
        for h in range(2):
            bf16_round_pair(a, re + 2*h, re + 2*h + 1, tt)
            bf16_round_pair(a, im + 2*h, im + 2*h + 1, tt)
            bf16_round_pair(a, oo + 2*h, oo + 2*h + 1, tt)
        for i in range(4):
            a(f"v_sub_f32 v{re+i}, v{re+i}, v{im+i}")
            src = V_BB + 2*j + i // 2
            if i % 2 == 0:
                a(f"v_lshlrev_b32 v{tt}, 16, v{src}")
            else:
                a(f"v_and_b32 v{tt}, 0xffff0000, v{src}")
            a(f"v_add_f32 v{oo+i}, v{oo+i}, v{tt}")
        for h in range(2):
            bf16_round_pair(a, re + 2*h, re + 2*h + 1, tt)
            bf16_round_pair(a, oo + 2*h, oo + 2*h + 1, tt)
        for i in range(4):
            e = V_T + 2 + i
            a(f"v_mul_f32 v{e}, s20, v{oo+i}")
            a(f"v_exp_f32 v{e}, v{e}")
        a("s_nop 0")
        for i in range(4):
            e = V_T + 2 + i
            a(f"v_add_f32 v{e}, 1.0, v{e}")
            a(f"v_rcp_f32 v{e}, v{e}")
        a("s_nop 0")
        for i in range(4):
            e = V_T + 2 + i
            a(f"v_mul_f32 v{oo+i}, v{oo+i}, v{e}")
        for h in range(2):
            bf16_round_pair(a, oo + 2*h, oo + 2*h + 1, tt)
        for i in range(4):
            a(f"v_mul_f32 v{re+i}, v{re+i}, v{oo+i}")
        for h in range(2):
            bf16_round_pair(a, re + 2*h, re + 2*h + 1, tt)
        for i in range(4):
            src = V_X + 2*j + i // 2
            if i % 2 == 0:
                a(f"v_lshlrev_b32 v{tt}, 16, v{src}")
            else:
                a(f"v_and_b32 v{tt}, 0xffff0000, v{src}")
            a(f"v_add_f32 v{re+i}, v{re+i}, v{tt}")
        p = V_T + 8 + 2*j
        a(f"v_cvt_pk_bf16_f32 v{p}, v{re}, v{re+1}")
        a(f"v_cvt_pk_bf16_f32 v{p+1}, v{re+2}, v{re+3}")
        a(f"buffer_store_dwordx2 v[{p}:{p+1}], v{V_OUT}, s[{S_O}:{S_O+3}], 0 offen offset:{16*j}")
    a.label("LB_end")
    a("s_endpgm")
    return name, 176, 64

def main(out):
    a = Asm()
    hdr = f"""; generated by gen/gen.py
; @launch kernel=prep_kernel grid=(1216,1,1) block=(256,1,1) lds=0
; @launch kernel=gemm1_kernel grid=(256,1,1) block=(256,1,1) lds={KA_D*KA_STAGE}
; @launch kernel=gemm2_kernel grid=(256,1,1) block=(256,1,1) lds={KB_D*16384}
.amdgcn_target "amdgcn-amd-amdhsa--gfx950"
.text
"""
    ks = [gen_k0(a), gen_kA(a), gen_kB(a)]
    txt = hdr + a.text() + '.section .rodata,"a"\n'
    for (n, v, s) in ks:
        txt += kernel_desc(n, v, s)
    open(out, "w").write(txt)

if __name__ == "__main__":
    main(sys.argv[1] if len(sys.argv) > 1 else "recurrent_scan__spectral_fnet__mixer_channel_mlp__prompt.s")
```

```python
import sys, math

import os, json
OPT = dict(kb2_rotmul=1, stamp=0, kb2_pf=0, negb=1, kb2_d=4, kb_nobar=0, kb_noread=0, kb_nomfma=0, kb_nwg=256, kb_mode=0, kb_rot=0, kb_d=4, ka_nostore=0, ka_nogelu=0)
OPT.update(json.loads(os.environ.get('GEN_OPT', '{}')))
WS_XN   = 0
WS_YB   = 2 << 20
WS_ABT  = 4 << 20
WS_H    = 8 << 20
WS_W1T  = 14 << 20
WS_W2T  = 16 << 20
WS_SIZE = 268435456
HSTR = 2816

class Asm:
    def __init__(self):
        self.lines = []
    def __call__(self, s):
        for l in s.strip().split("\n"):
            self.lines.append("    " + l.strip())
    def label(self, l):
        self.lines.append(l + ":")
    def raw(self, s):
        self.lines.append(s)
    def text(self):
        return "\n".join(self.lines) + "\n"

def srd_from(a, d, lo, hi, size):
    a(f"s_mov_b32 s{d}, s{lo}")
    a(f"s_and_b32 s{d+1}, s{hi}, 0xffff")
    a(f"s_mov_b32 s{d+2}, {size}")
    a(f"s_mov_b32 s{d+3}, 0x20000")

def srd_off(a, d, lo, hi, off, size):
    a(f"s_add_u32 s{d}, s{lo}, {off}")
    a(f"s_addc_u32 s{d+1}, s{hi}, 0")
    a(f"s_and_b32 s{d+1}, s{d+1}, 0xffff")
    a(f"s_mov_b32 s{d+2}, {size}")
    a(f"s_mov_b32 s{d+3}, 0x20000")

def kernel_header(a, name):
    a.raw(f".globl {name}")
    a.raw(".p2align 8")
    a.raw(f".type {name},@function")
    a.label(name)

def kernel_desc(name, vgpr, sgpr):
    acc = (vgpr + 3) // 4 * 4
    return f""".p2align 6
.amdhsa_kernel {name}
  .amdhsa_next_free_vgpr {vgpr}
  .amdhsa_next_free_sgpr {sgpr}
  .amdhsa_accum_offset {acc}
  .amdhsa_group_segment_fixed_size 0
  .amdhsa_kernarg_size 104
  .amdhsa_user_sgpr_count 2
  .amdhsa_user_sgpr_kernarg_segment_ptr 1
  .amdhsa_system_sgpr_workgroup_id_x 1
.end_amdhsa_kernel
"""

DPP = "row_mask:0xf bank_mask:0xf"
def wave_reduce(a, v, t):
    a(f"""
    s_nop 1
    v_add_f32_dpp v{t}, v{v}, v{v} quad_perm:[1,0,3,2] {DPP}
    s_nop 1
    v_add_f32_dpp v{v}, v{t}, v{t} quad_perm:[2,3,0,1] {DPP}
    s_nop 1
    v_add_f32_dpp v{t}, v{v}, v{v} row_half_mirror {DPP}
    s_nop 1
    v_add_f32_dpp v{v}, v{t}, v{t} row_mirror {DPP}
    s_nop 1
    ds_swizzle_b32 v{t}, v{v} offset:0x401F
    s_waitcnt lgkmcnt(0)
    v_add_f32 v{v}, v{v}, v{t}
    v_mov_b32 v{t}, v{v}
    s_nop 1
    v_permlane32_swap_b32 v{v}, v{t}
    s_nop 1
    v_add_f32 v{v}, v{v}, v{t}
    """)

def layernorm8(a, f, p, tmp):
    s, t, mean, q, d, r = tmp[:6]
    a(f"v_add_f32 v{s}, v{f[0]}, v{f[1]}")
    for i in range(2, 8):
        a(f"v_add_f32 v{s}, v{s}, v{f[i]}")
    wave_reduce(a, s, t)
    a(f"v_mul_f32 v{mean}, 0x3b000000, v{s}")
    a(f"v_sub_f32 v{d}, v{f[0]}, v{mean}")
    a(f"v_mul_f32 v{q}, v{d}, v{d}")
    for i in range(1, 8):
        a(f"v_sub_f32 v{d}, v{f[i]}, v{mean}")
        a(f"v_fmac_f32 v{q}, v{d}, v{d}")
    wave_reduce(a, q, t)
    a(f"v_mul_f32 v{q}, 0x3b000000, v{q}")
    a(f"v_cvt_pk_bf16_f32 v{t}, v{mean}, v{q}")
    a(f"v_lshlrev_b32 v{mean}, 16, v{t}")
    a(f"v_and_b32 v{q}, 0xffff0000, v{t}")
    a(f"v_add_f32 v{q}, 0x3727c5ac, v{q}")
    a(f"v_cvt_pk_bf16_f32 v{t}, v{q}, v{q}")
    a(f"v_lshlrev_b32 v{q}, 16, v{t}")
    a(f"v_sqrt_f32 v{q}, v{q}")
    a("s_nop 0")
    a(f"v_cvt_pk_bf16_f32 v{t}, v{q}, v{q}")
    a(f"v_lshlrev_b32 v{q}, 16, v{t}")
    a(f"v_rcp_f32 v{r}, v{q}")
    a("s_nop 0")
    for i in range(0, 8, 2):
        a(f"v_sub_f32 v{f[i]}, v{f[i]}, v{mean}")
        a(f"v_sub_f32 v{f[i+1]}, v{f[i+1]}, v{mean}")
        a(f"v_cvt_pk_bf16_f32 v{t}, v{f[i]}, v{f[i+1]}")
        a(f"v_lshlrev_b32 v{f[i]}, 16, v{t}")
        a(f"v_and_b32 v{f[i+1]}, 0xffff0000, v{t}")
        a(f"v_mul_f32 v{f[i]}, v{f[i]}, v{r}")
        a(f"v_mul_f32 v{f[i+1]}, v{f[i+1]}, v{r}")
        a(f"v_cvt_pk_bf16_f32 v{p[i//2]}, v{f[i]}, v{f[i+1]}")
        a(f"v_lshlrev_b32 v{f[i]}, 16, v{p[i//2]}")
        a(f"v_and_b32 v{f[i+1]}, 0xffff0000, v{p[i//2]}")

def gen_k0(a):
    name = "prep_kernel"
    kernel_header(a, name)
    a("""
    s_load_dwordx2 s[4:5], s[0:1], 0
    s_load_dwordx2 s[6:7], s[0:1], 48
    s_load_dwordx2 s[8:9], s[0:1], 64
    s_load_dwordx2 s[10:11], s[0:1], 96
    v_and_b32 v1, 63, v0
    v_lshrrev_b32 v2, 6, v0
    s_waitcnt lgkmcnt(0)
    """)
    srd_from(a, 12, 10, 11, WS_SIZE)
    a("s_cmp_lt_u32 s2, 512")
    a("s_cbranch_scc1 L0_ln")
    a("s_cmp_lt_u32 s2, 864")
    a("s_cbranch_scc1 L0_w1")
    a("s_cmp_lt_u32 s2, 1216")
    a("s_cbranch_scc1 L0_w2")
    a("s_endpgm")
    a.label("L0_ln")
    srd_from(a, 16, 4, 5, 2048 * 1024)
    a("""
    s_lshl_b32 s3, s2, 2
    v_add_u32 v3, s3, v2            ; row
    v_lshlrev_b32 v4, 10, v3
    v_lshl_add_u32 v4, v1, 4, v4    ; row*1024 + lane*16
    buffer_load_dwordx4 v[8:11], v4, s[16:19], 0 offen
    ; h pad zero: offset = WS_H + row*2816 + 2752 + lane*16 (lanes 0..3)
    s_mov_b32 s20, 2816
    v_mul_lo_u32 v5, v3, s20
    v_lshl_add_u32 v5, v1, 4, v5
    v_add_u32 v5, %d, v5
    v_mov_b32 v6, 0x7ffffff0
    v_cmp_gt_u32 vcc, 4, v1
    s_nop 1
    v_cndmask_b32 v5, v6, v5, vcc
    v_mov_b32 v32, 0
    v_mov_b32 v33, 0
    v_mov_b32 v34, 0
    v_mov_b32 v35, 0
    buffer_store_dwordx4 v[32:35], v5, s[12:15], 0 offen
    s_waitcnt vmcnt(1)
    """ % (WS_H + 2752))
    f = list(range(12, 20))
    for i in range(4):
        a(f"v_lshlrev_b32 v{f[2*i]}, 16, v{8+i}")
        a(f"v_and_b32 v{f[2*i+1]}, 0xffff0000, v{8+i}")
    tmp = list(range(20, 26))
    layernorm8(a, f, [28, 29, 30, 31], tmp)
    a("buffer_store_dwordx4 v[28:31], v4, s[12:15], 0 offen")
    layernorm8(a, f, [36, 37, 38, 39], tmp)
    a(f"v_add_u32 v4, {WS_YB}, v4")
    a("buffer_store_dwordx4 v[36:39], v4, s[12:15], 0 offen")
    a("s_endpgm")
    a.label("L0_w1")
    srd_from(a, 16, 6, 7, 512 * 2752)
    a("""
    s_sub_u32 s3, s2, 512
    s_lshl_b32 s3, s3, 2
    v_add_u32 v3, s3, v2            ; W
    v_and_b32 v4, 63, v3            ; dblk
    v_lshrrev_b32 v5, 6, v3         ; fblk
    v_lshl_add_u32 v5, v5, 6, v1    ; f
    s_mov_b32 s20, 22016            ; 8*2752
    v_mul_lo_u32 v6, v4, s20
    v_lshl_add_u32 v6, v5, 1, v6    ; src offset = dblk*8*2752 + f*2
    s_mov_b32 s21, 2752
    s_mov_b32 s22, 5504
    s_mov_b32 s23, 8256
    s_mov_b32 s24, 11008
    s_mov_b32 s25, 13760
    s_mov_b32 s26, 16512
    s_mov_b32 s27, 19264
    buffer_load_ushort v8, v6, s[16:19], 0 offen
    buffer_load_ushort v16, v6, s[16:19], s21 offen
    buffer_load_ushort v9, v6, s[16:19], s22 offen
    buffer_load_ushort v17, v6, s[16:19], s23 offen
    buffer_load_ushort v10, v6, s[16:19], s24 offen
    buffer_load_ushort v18, v6, s[16:19], s25 offen
    buffer_load_ushort v11, v6, s[16:19], s26 offen
    buffer_load_ushort v19, v6, s[16:19], s27 offen
    v_lshlrev_b32 v7, 10, v5
    v_lshl_add_u32 v7, v4, 4, v7
    v_add_u32 v7, %d, v7
    v_mov_b32 v12, 0x7ffffff0
    v_cmp_gt_u32 vcc, 1376, v5
    s_nop 1
    v_cndmask_b32 v7, v12, v7, vcc
    s_waitcnt vmcnt(0)
    v_lshl_or_b32 v8, v16, 16, v8
    v_lshl_or_b32 v9, v17, 16, v9
    v_lshl_or_b32 v10, v18, 16, v10
    v_lshl_or_b32 v11, v19, 16, v11
    buffer_store_dwordx4 v[8:11], v7, s[12:15], 0 offen
    s_endpgm
    """ % WS_W1T)
    a.label("L0_w2")
    srd_from(a, 16, 8, 9, 1376 * 1024)
    a("""
    s_sub_u32 s3, s2, 864
    s_lshl_b32 s3, s3, 2
    v_add_u32 v3, s3, v2            ; W
    v_and_b32 v4, 7, v3             ; eblk
    v_lshrrev_b32 v5, 3, v3         ; fblk
    v_lshl_add_u32 v4, v4, 6, v1    ; e
    v_lshlrev_b32 v6, 13, v5        ; fblk*8*1024
    v_lshl_add_u32 v6, v4, 1, v6
    buffer_load_ushort v8, v6, s[16:19], 0 offen
    buffer_load_ushort v16, v6, s[16:19], 0 offen offset:1024
    buffer_load_ushort v9, v6, s[16:19], 0 offen offset:2048
    buffer_load_ushort v17, v6, s[16:19], 0 offen offset:3072
    s_mov_b32 s21, 4096
    buffer_load_ushort v10, v6, s[16:19], s21 offen
    buffer_load_ushort v18, v6, s[16:19], s21 offen offset:1024
    buffer_load_ushort v11, v6, s[16:19], s21 offen offset:2048
    buffer_load_ushort v19, v6, s[16:19], s21 offen offset:3072
    s_mov_b32 s20, 2816
    v_mul_lo_u32 v7, v4, s20
    v_lshl_add_u32 v7, v5, 4, v7
    v_add_u32 v7, %d, v7
    s_waitcnt vmcnt(0)
    v_lshl_or_b32 v8, v16, 16, v8
    v_lshl_or_b32 v9, v17, 16, v9
    v_lshl_or_b32 v10, v18, 16, v10
    v_lshl_or_b32 v11, v19, 16, v11
    buffer_store_dwordx4 v[8:11], v7, s[12:15], 0 offen
    s_endpgm
    """ % WS_W2T)
    return name, 40, 32

def frag_pattern(a, dst4, vlane, t0, t1):
    a(f"v_and_b32 v{t0}, 31, v{vlane}")
    a(f"v_lshrrev_b32 v{t1}, 1, v{t0}")
    a(f"v_and_b32 v{t1}, 7, v{t1}")
    a(f"v_lshlrev_b32 v{t0}, 7, v{t0}")
    for kk in range(4):
        d = dst4[kk]
        a(f"v_lshrrev_b32 v{d}, 5, v{vlane}")
        a(f"v_add_u32 v{d}, {2*kk}, v{d}")
        a(f"v_xor_b32 v{d}, v{d}, v{t1}")
        a(f"v_lshl_add_u32 v{d}, v{d}, 4, v{t0}")

def dma_voff(a, dst, vlane, vrow, stride_sgpr, t0, t1):
    a(f"v_lshrrev_b32 v{t0}, 1, v{vrow}")
    a(f"v_and_b32 v{t0}, 7, v{t0}")
    a(f"v_and_b32 v{t1}, 7, v{vlane}")
    a(f"v_xor_b32 v{t0}, v{t0}, v{t1}")
    a(f"v_mul_lo_u32 v{dst}, v{vrow}, s{stride_sgpr}")
    a(f"v_lshl_add_u32 v{dst}, v{t0}, 4, v{dst}")

def bf16_round_pair(a, x0, x1, t):
    a(f"v_cvt_pk_bf16_f32 v{t}, v{x0}, v{x1}")
    a(f"v_lshlrev_b32 v{x0}, 16, v{t}")
    a(f"v_and_b32 v{x1}, 0xffff0000, v{t}")

KA_D = 4
KA_STAGE = 36864
def gen_kA(a):
    name = "gemm1_kernel"
    D = KA_D
    kernel_header(a, name)
    a("""
    s_cmp_ge_u32 s2, 256
    s_cbranch_scc1 LA_end
    s_load_dwordx2 s[4:5], s[0:1], 24      ; Wd_re
    s_load_dwordx2 s[6:7], s[0:1], 32      ; Wd_im
    s_load_dwordx2 s[8:9], s[0:1], 56      ; b1
    s_load_dwordx2 s[10:11], s[0:1], 96    ; ws
    v_and_b32 v1, 63, v0                   ; lane
    v_lshrrev_b32 v2, 6, v0                ; wave
    s_nop 0
    v_readfirstlane_b32 s12, v2
    s_and_b32 s13, s2, 15                  ; sblk
    s_lshr_b32 s14, s2, 4                  ; grp
    s_waitcnt lgkmcnt(0)
    """)
    V_ACC = 16
    V_FR = 96
    V_RW = 144
    V_RA = 160
    V_LA = 176
    V_LW = 180
    V_B1 = 184
    V_OUT = 182
    V_T = 224
    S_SRDW = 32
    S_SRDA = 52
    S_OUT = 56
    S_B1 = 60
    S_KOFF = 64
    S_WB = 65
    S_WB2 = 66
    S_U = 70
    S_CNT = 75
    S_U0 = 76
    S_STR = 77
    t0, t1 = V_T, V_T + 1
    P = [V_T + 2 + i for i in range(4)]
    frag_pattern(a, P, 1, t0, t1)
    a(f"v_lshlrev_b32 v{t0}, 12, v2")
    for sl in range(D):
        for kk in range(4):
            a(f"v_add_u32 v{V_RW + sl*4 + kk}, {sl*KA_STAGE + 16384}, v{P[kk]}")
            a(f"v_add_u32 v{V_RA + sl*4 + kk}, {sl*KA_STAGE}, v{P[kk]}")
            a(f"v_add_u32 v{V_RA + sl*4 + kk}, v{V_RA + sl*4 + kk}, v{t0}")
    a(f"s_mov_b32 s{S_STR}, 1024")
    vrow = V_T + 6
    for j in range(4):
        a(f"v_lshrrev_b32 v{vrow}, 3, v1")
        a(f"v_lshl_add_u32 v{vrow}, v2, 5, v{vrow}")
        a(f"v_add_u32 v{vrow}, {8*j}, v{vrow}")
        dma_voff(a, V_LA + j, 1, vrow, S_STR, t0, t1)
    a(f"v_lshrrev_b32 v{vrow}, 3, v1")
    a(f"v_lshl_add_u32 v{vrow}, v2, 3, v{vrow}")
    dma_voff(a, V_LW, 1, vrow, S_STR, t0, t1)
    a(f"s_lshl_b32 s{S_WB}, s12, 12")
    a(f"s_lshl_b32 s{S_WB2}, s12, 10")
    a(f"s_add_u32 s{S_WB2}, s{S_WB2}, 16384")
    srd_from(a, S_OUT, 10, 11, WS_SIZE)
    a(f"s_mov_b32 s{S_KOFF}, 0")
    a("s_cmp_lt_u32 s14, 7")
    a("s_cbranch_scc0 LA_part2")

    def dma(stage):
        sl = stage % D
        for j in range(4):
            a(f"s_add_u32 m0, s{S_WB}, {sl*KA_STAGE + j*1024}")
            a("s_nop 0")
            a(f"buffer_load_dwordx4 v{V_LA+j}, s[{S_SRDA}:{S_SRDA+3}], s{S_KOFF} offen lds")
        for u in range(5):
            a(f"s_add_u32 m0, s{S_WB2}, {sl*KA_STAGE + u*4096}")
            a("s_nop 0")
            a(f"buffer_load_dwordx4 v{V_LW}, s[{S_SRDW+4*u}:{S_SRDW+4*u+3}], s{S_KOFF} offen lds")
        a(f"s_add_u32 s{S_KOFF}, s{S_KOFF}, 128")

    def reads(g, kk, buf):
        sl = g % D
        base = V_FR + buf * 24
        a(f"ds_read_b128 v[{base}:{base+3}], v{V_RA + sl*4 + kk}")
        for u in range(5):
            a(f"ds_read_b128 v[{base+4+4*u}:{base+7+4*u}], v{V_RW + sl*4 + kk} offset:{u*4096}")

    def mainloop(part, extra_outstanding):
        T = 8
        for s in range(D):
            dma(s)
        a(f"s_waitcnt vmcnt({(D-1)*9})")
        a("s_barrier")
        reads(0, 0, 0)
        for g in range(T):
            for q in range(4):
                idx = g * 4 + q
                cur = idx % 2
                nxt = 1 - cur
                if q < 3:
                    reads(g, q + 1, nxt)
                    a("s_waitcnt lgkmcnt(6)")
                else:
                    a("s_waitcnt lgkmcnt(0)")
                    if g < T - 1:
                        n = (min(g + D - 1, T - 1) - (g + 1)) * 9
                        a(f"s_waitcnt vmcnt({n})")
                        a("s_barrier")
                        if g + D < T:
                            dma(g + D)
                        reads(g + 1, 0, nxt)
                base = V_FR + cur * 24
                for u in range(5):
                    acc = f"v[{V_ACC+16*u}:{V_ACC+16*u+15}]"
                    act = f"v[{base}:{base+3}]"
                    wgt = f"v[{base+4+4*u}:{base+7+4*u}]"
                    c = "0" if idx == 0 else acc
                    if part == 1:
                        a(f"v_mfma_f32_32x32x16_bf16 {acc}, {act}, {wgt}, {c}")
                    else:
                        a(f"v_mfma_f32_32x32x16_bf16 {acc}, {wgt}, {act}, {c}")
        a("s_nop 15")
        a("s_nop 3")

    a(f"""
    s_mul_i32 s{S_U0}, s14, 5
    s_sub_u32 s15, s14, 4
    s_max_i32 s15, s15, 0
    s_sub_u32 s{S_U0}, s{S_U0}, s15
    s_cmp_lt_u32 s14, 4
    s_cselect_b32 s{S_CNT}, 5, 4
    """)
    for u in range(5):
        a(f"s_sub_u32 s15, s{S_CNT}, 1")
        a(f"s_min_u32 s15, s15, {u}")
        a(f"s_add_u32 s{S_U+u}, s{S_U0}, s15")
        a(f"s_cmp_lt_u32 s{S_U+u}, 16")
        a(f"s_cselect_b32 s16, s4, s6")
        a(f"s_cselect_b32 s17, s5, s7")
        a(f"s_and_b32 s15, s{S_U+u}, 15")
        a(f"s_lshl_b32 s15, s15, 15")
        srd_off(a, S_SRDW + 4*u, 16, 17, "s15", 32768)
    a("s_lshl_b32 s15, s13, 17")
    a(f"s_add_u32 s15, s15, {WS_XN}")
    srd_off(a, S_SRDA, 10, 11, "s15", 131072)
    a(f"""
    v_and_b32 v{t0}, 31, v1
    v_lshlrev_b32 v{V_OUT}, 13, v{t0}
    v_lshrrev_b32 v{t0}, 5, v1
    v_lshlrev_b32 v{t0}, 3, v{t0}
    v_lshl_add_u32 v{t0}, v2, 6, v{t0}
    v_add_u32 v{V_OUT}, v{V_OUT}, v{t0}
    s_lshl_b32 s15, s13, 8
    s_add_u32 s15, s15, {WS_ABT}
    v_add_u32 v{V_OUT}, s15, v{V_OUT}
    """)
    mainloop(1, 0)
    for u in range(5):
        if u == 4:
            a(f"s_cmp_lt_u32 s{S_CNT}, 5")
            a("s_cbranch_scc1 LA_end")
        a(f"s_and_b32 s15, s{S_U+u}, 15")
        a(f"s_lshl_b32 s15, s15, 18")
        a(f"s_lshr_b32 s16, s{S_U+u}, 4")
        a(f"s_lshl_b32 s16, s16, 12")
        a(f"s_add_u32 s15, s15, s16")
        a(f"s_cmp_lt_u32 s{S_U+u}, 16")
        a(f"s_cselect_b32 s17, 0, 0x80008000")
        for j in range(4):
            r = V_ACC + 16*u + 4*j
            p = V_T + 2*(j % 4)
            a(f"v_cvt_pk_bf16_f32 v{p}, v{r}, v{r+1}")
            a(f"v_cvt_pk_bf16_f32 v{p+1}, v{r+2}, v{r+3}")
            if OPT['negb']:
                a(f"v_xor_b32 v{p}, s17, v{p}")
                a(f"v_xor_b32 v{p+1}, s17, v{p+1}")
            if not OPT['ka_nostore'] or (u == 0 and j == 0):
                a(f"buffer_store_dwordx2 v[{p}:{p+1}], v{V_OUT}, s[{S_OUT}:{S_OUT+3}], s15 offen offset:{16*j}")
    a("s_endpgm")

    a.label("LA_part2")
    a(f"""
    s_sub_u32 s14, s14, 7
    s_mul_i32 s{S_U0}, s14, 5
    s_sub_u32 s15, s14, 7
    s_max_i32 s15, s15, 0
    s_sub_u32 s{S_U0}, s{S_U0}, s15
    s_cmp_lt_u32 s14, 7
    s_cselect_b32 s{S_CNT}, 5, 4
    """)
    for u in range(5):
        a(f"s_sub_u32 s15, s{S_CNT}, 1")
        a(f"s_min_u32 s15, s15, {u}")
        a(f"s_add_u32 s{S_U+u}, s{S_U0}, s15")
        a(f"s_lshl_b32 s15, s{S_U+u}, 15")
        a(f"s_add_u32 s15, s15, {WS_W1T}")
        srd_off(a, S_SRDW + 4*u, 10, 11, "s15", 32768)
    a("s_lshl_b32 s15, s13, 17")
    a(f"s_add_u32 s15, s15, {WS_YB}")
    srd_off(a, S_SRDA, 10, 11, "s15", 131072)
    srd_from(a, S_B1, 8, 9, 2752)
    a(f"v_lshrrev_b32 v{t0}, 5, v1")
    a(f"v_lshlrev_b32 v{t0}, 3, v{t0}")
    for u in range(5):
        a(f"s_lshl_b32 s15, s{S_U+u}, 6")
        for j in range(4):
            r = V_B1 + 8*u + 2*j
            a(f"buffer_load_dwordx2 v[{r}:{r+1}], v{t0}, s[{S_B1}:{S_B1+3}], s15 offen offset:{16*j}")
    a(f"""
    v_and_b32 v{t1}, 31, v1
    v_lshl_add_u32 v{t1}, v2, 5, v{t1}
    s_lshl_b32 s15, s13, 7
    v_add_u32 v{t1}, s15, v{t1}
    s_mov_b32 s15, {HSTR}
    v_mul_lo_u32 v{V_OUT}, v{t1}, s15
    v_add_u32 v{V_OUT}, v{V_OUT}, v{t0}
    v_add_u32 v{V_OUT}, {WS_H}, v{V_OUT}
    """)
    mainloop(2, 20)
    K0 = -2.0 * math.log2(math.e) * 0.7978845608028654
    K1 = K0 * 0.044715
    import struct
    def f32hex(x): return "0x%08x" % struct.unpack("<I", struct.pack("<f", x))[0]
    a(f"s_mov_b32 s20, {f32hex(K0)}")
    a(f"s_mov_b32 s21, {f32hex(K1)}")
    a(f"v_mov_b32 v{V_T+15}, s20")
    for u in range(5):
        if u == 4:
            a(f"s_cmp_lt_u32 s{S_CNT}, 5")
            a("s_cbranch_scc1 LA_end")
        a(f"s_lshl_b32 s15, s{S_U+u}, 6")
        for j in range(4):
            r = V_ACC + 16*u + 4*j
            bb = V_B1 + 8*u + 2*j
            tt = V_T + 8
            bf16_round_pair(a, r, r+1, tt)
            bf16_round_pair(a, r+2, r+3, tt)
            for i in range(4):
                src = bb + i // 2
                if i % 2 == 0:
                    a(f"v_lshlrev_b32 v{tt}, 16, v{src}")
                else:
                    a(f"v_and_b32 v{tt}, 0xffff0000, v{src}")
                a(f"v_add_f32 v{r+i}, v{r+i}, v{tt}")
            bf16_round_pair(a, r, r+1, tt)
            bf16_round_pair(a, r+2, r+3, tt)
            for i in range(4):
                e = V_T + 10 + i
                a(f"v_mul_f32 v{e}, v{r+i}, v{r+i}")
                a(f"v_fma_f32 v{e}, v{e}, s21, v{V_T+15}")
                a(f"v_mul_f32 v{e}, v{e}, v{r+i}")
                a(f"v_exp_f32 v{e}, v{e}")
            a("s_nop 0")
            for i in range(4):
                e = V_T + 10 + i
                a(f"v_add_f32 v{e}, 1.0, v{e}")
                a(f"v_rcp_f32 v{e}, v{e}")
            a("s_nop 0")
            for i in range(4):
                e = V_T + 10 + i
                a(f"v_mul_f32 v{r+i}, v{r+i}, v{e}")
            p = V_T + 2*(j % 4)
            a(f"v_cvt_pk_bf16_f32 v{p}, v{r}, v{r+1}")
            a(f"v_cvt_pk_bf16_f32 v{p+1}, v{r+2}, v{r+3}")
            if not OPT['ka_nostore'] or (u == 0 and j == 0):
                a(f"buffer_store_dwordx2 v[{p}:{p+1}], v{V_OUT}, s[{S_OUT}:{S_OUT+3}], s15 offen offset:{16*j}")
    a.label("LA_end")
    a("s_endpgm")
    return name, 240, 96

KB_D = OPT['kb_d']
def gen_kB(a):
    name = "gemm2_kernel"
    D = KB_D
    STG = 16384
    kernel_header(a, name)
    a("""
    s_cmp_ge_u32 s2, %d
    s_cbranch_scc1 LB_end
    s_load_dwordx2 s[4:5], s[0:1], 0       ; x
    s_load_dwordx2 s[6:7], s[0:1], 8       ; Ws_re
    s_load_dwordx2 s[8:9], s[0:1], 16      ; Ws_im
    s_load_dwordx2 s[10:11], s[0:1], 72    ; b2
    s_load_dwordx2 s[12:13], s[0:1], 80    ; out
    s_load_dwordx2 s[14:15], s[0:1], 96    ; ws
    v_and_b32 v1, 63, v0                   ; lane
    v_lshrrev_b32 v2, 6, v0                ; wave
    s_nop 0
    v_readfirstlane_b32 s40, v2            ; wave id
    ; tile mapping: xcd = wg&7, idx = wg>>3 ; tblk = xcd*4 + (idx&3) ; eblk = idx>>2
    s_and_b32 s41, s2, 7
    s_lshr_b32 s42, s2, 3
    s_and_b32 s43, s42, 3
    s_lshl_b32 s41, s41, 2
    s_add_u32 s41, s41, s43                ; tblk
    s_lshr_b32 s42, s42, 2                 ; eblk
    s_waitcnt lgkmcnt(0)
    """ % OPT['kb_nwg'])
    if OPT['kb_mode'] == 2:
        a("s_mov_b32 s41, 0")
        a("s_mov_b32 s42, 0")
    if OPT['kb_mode'] == 3:
        a("s_and_b32 s41, s41, 3")
    if OPT['kb_mode'] == 4:
        a("s_mov_b32 s42, 0")
    S_A, S_B, S_X, S_B2, S_O = 16, 20, 24, 28, 32
    S_KA, S_KB, S_WB, S_CNT = 44, 45, 46, 47
    V_ACC = 16
    V_FR = 64
    V_RA = 176
    V_RB = 188
    V_LA = 136
    V_LB = 138
    V_LM = 140
    V_X = 144
    V_BB = 152
    V_OUT = 142
    V_T = 160
    NSETS = (D * STG + 65535) // 65536
    t0, t1 = V_T, V_T + 1
    P = [V_T + 2 + i for i in range(4)]
    frag_pattern(a, P, 1, t0, t1)
    a(f"v_and_b32 v{t0}, 1, v2")
    a(f"v_lshlrev_b32 v{t0}, 12, v{t0}")
    a(f"v_lshrrev_b32 v{t1}, 1, v2")
    a(f"v_lshlrev_b32 v{t1}, 12, v{t1}")
    for kk in range(4):
        a(f"v_add_u32 v{V_RA+kk}, v{P[kk]}, v{t0}")
        a(f"v_add_u32 v{V_RB+kk}, v{P[kk]}, v{t1}")
        for st in range(1, NSETS):
            a(f"v_add_u32 v{V_RA+4*st+kk}, {65536*st}, v{V_RA+kk}")
            a(f"v_add_u32 v{V_RB+4*st+kk}, {65536*st}, v{V_RB+kk}")
    vrow = V_T + 6
    a("s_mov_b32 s48, 8192")
    a("s_mov_b32 s49, 4096")
    a(f"s_mov_b32 s50, {HSTR}")
    for j in range(2):
        a(f"v_lshrrev_b32 v{vrow}, 3, v1")
        a(f"v_lshl_add_u32 v{vrow}, v2, 4, v{vrow}")
        a(f"v_add_u32 v{vrow}, {8*j}, v{vrow}")
        dma_voff(a, V_LA + j, 1, vrow, 48, t0, t1)
        dma_voff(a, V_LB + j, 1, vrow, 49, t0, t1)
        dma_voff(a, V_LM + j, 1, vrow, 50, t0, t1)
    a(f"s_lshl_b32 s{S_WB}, s40, 11")
    a("s_lshl_b32 s51, s42, 19")
    a(f"s_add_u32 s51, s51, {WS_ABT}")
    srd_off(a, S_A, 14, 15, "s51", 64 * 8192)
    a("s_lshl_b32 s52, s41, 18")
    srd_off(a, S_B, 6, 7, "s52", 64 * 4096)
    srd_from(a, S_X, 4, 5, 2048 * 1024)
    srd_from(a, S_B2, 10, 11, 1024)
    srd_from(a, S_O, 12, 13, 2048 * 1024)
    if OPT['kb_rot'] == 0:
        a(f"s_mov_b32 s54, 0")
    elif OPT['kb_rot'] == 1:
        a(f"s_lshr_b32 s54, s2, 3")
        a(f"s_lshl_b32 s54, s54, 7")
    elif OPT['kb_rot'] == 2:
        a(f"s_lshl_b32 s54, s42, 9")
    elif OPT['kb_rot'] == 3:
        a(f"s_lshl_b32 s54, s43, 10")
    a(f"s_mov_b32 s{S_KA}, s54")
    a(f"s_mov_b32 s{S_KB}, s54")
    a(f"""
    v_and_b32 v{t0}, 1, v2
    v_lshlrev_b32 v{t0}, 5, v{t0}
    v_lshrrev_b32 v{t1}, 5, v1
    v_lshl_add_u32 v{t0}, v{t1}, 2, v{t0}
    s_lshl_b32 s53, s42, 6
    v_add_u32 v{t0}, s53, v{t0}
    v_lshlrev_b32 v{t0}, 1, v{t0}              ; ecol*2
    v_lshrrev_b32 v{t1}, 1, v2
    v_lshlrev_b32 v{t1}, 5, v{t1}
    v_and_b32 v{V_OUT}, 31, v1
    v_add_u32 v{t1}, v{t1}, v{V_OUT}
    s_lshl_b32 s53, s41, 6
    v_add_u32 v{t1}, s53, v{t1}
    v_lshl_add_u32 v{V_OUT}, v{t1}, 10, v{t0}
    """)
    for j in range(4):
        a(f"buffer_load_dwordx2 v[{V_X+2*j}:{V_X+2*j+1}], v{V_OUT}, s[{S_X}:{S_X+3}], 0 offen offset:{16*j}")
        a(f"buffer_load_dwordx2 v[{V_BB+2*j}:{V_BB+2*j+1}], v{t0}, s[{S_B2}:{S_B2+3}], 0 offen offset:{16*j}")
    for i in range(48):
        a(f"v_mov_b32 v{V_ACC+i}, 0")

    T = 86
    def phase_of(s):
        return 0 if s < 32 else (1 if s < 64 else 2)

    def dma(stage):
        sl = stage % D
        ph = phase_of(stage)
        if stage == 32:
            a("s_lshl_b32 s52, s41, 18")
            srd_off(a, S_B, 8, 9, "s52", 64 * 4096)
            a(f"s_mov_b32 s{S_KB}, s54")
            a(f"s_add_u32 s{S_KA}, s54, 4096")
        if stage == 64:
            a(f"s_mul_i32 s51, s42, {64*HSTR}")
            a(f"s_add_u32 s51, s51, {WS_W2T}")
            srd_off(a, S_A, 14, 15, "s51", 64 * HSTR)
            a(f"s_mul_i32 s52, s41, {64*HSTR}")
            a(f"s_add_u32 s52, s52, {WS_H}")
            srd_off(a, S_B, 14, 15, "s52", 64 * HSTR)
            a(f"s_mov_b32 s{S_KA}, 0")
            a(f"s_mov_b32 s{S_KB}, 0")
        va = V_LA if ph < 2 else V_LM
        vb = V_LB if ph < 2 else V_LM
        for j in range(2):
            a(f"s_add_u32 m0, s{S_WB}, {sl*STG + j*1024}")
            a("s_nop 0")
            if OPT['kb_mode'] == 1:
                r = 200 + (sl % 3) * 16 + j * 4
                a(f"buffer_load_dwordx4 v[{r}:{r+3}], v{va+j}, s[{S_A}:{S_A+3}], s{S_KA} offen")
            else:
                a(f"buffer_load_dwordx4 v{va+j}, s[{S_A}:{S_A+3}], s{S_KA} offen lds")
        for j in range(2):
            a(f"s_add_u32 m0, s{S_WB}, {sl*STG + 8192 + j*1024}")
            a("s_nop 0")
            if OPT['kb_mode'] == 1:
                r = 200 + (sl % 3) * 16 + 8 + j * 4
                a(f"buffer_load_dwordx4 v[{r}:{r+3}], v{vb+j}, s[{S_B}:{S_B+3}], s{S_KB} offen")
            else:
                a(f"buffer_load_dwordx4 v{vb+j}, s[{S_B}:{S_B+3}], s{S_KB} offen lds")
        if ph < 2:
            a(f"s_add_u32 s{S_KB}, s{S_KB}, 128")
            a(f"s_and_b32 s{S_KB}, s{S_KB}, 4095")
            a(f"s_add_u32 s{S_KA}, s{S_KB}, {4096*ph}")
        else:
            a(f"s_add_u32 s{S_KA}, s{S_KA}, 128")
            a(f"s_add_u32 s{S_KB}, s{S_KB}, 128")

    def reads(g):
        sl = g % D
        base = V_FR + (g % 2) * 32
        for kk in range(4):
            st, off = divmod(sl * STG, 65536)
            a(f"ds_read_b128 v[{base+8*kk}:{base+8*kk+3}], v{V_RA+4*st+kk} offset:{off}")
            a(f"ds_read_b128 v[{base+8*kk+4}:{base+8*kk+7}], v{V_RB+4*st+kk} offset:{off+8192}")

    def sig(g):
        ld = g + D
        ldk = None
        if ld < T:
            ldk = (phase_of(ld), ld in (32, 64))
        n = (min(g + D - 1, T - 1) - (g + 1)) * 4 if g < T - 1 else -1
        return (phase_of(g), ldk, n, g % D, g % 2)

    def step(g):
        a("s_waitcnt lgkmcnt(0)")
        if g < T - 1:
            n = (min(g + D - 1, T - 1) - (g + 1)) * 4
            a(f"s_waitcnt vmcnt({n})")
            if not OPT['kb_nobar']:
                a("s_barrier")
            if g + D < T:
                dma(g + D)
            if not OPT['kb_noread']:
                reads(g + 1)
        base = V_FR + (g % 2) * 32
        accb = V_ACC + 16 * phase_of(g)
        acc = f"v[{accb}:{accb+15}]"
        for kk in range(4 if not OPT['kb_nomfma'] else 0):
            a(f"v_mfma_f32_32x32x16_bf16 {acc}, v[{base+8*kk}:{base+8*kk+3}], v[{base+8*kk+4}:{base+8*kk+7}], {acc}")

    for s in range(D):
        dma(s)
    a(f"s_waitcnt vmcnt({(D-1)*4})")
    a("s_barrier")
    reads(0)
    Pd = D if D % 2 == 0 else 2 * D
    g = 0
    nl = 0
    while g < T:
        n = 1
        while g + (n + 1) * Pd <= T and all(sig(g + n * Pd + i) == sig(g + i) for i in range(Pd)):
            n += 1
        if n >= 2 and g + Pd <= T:
            a(f"s_mov_b32 s{S_CNT}, {n}")
            a.label(f"LB_loop{nl}")
            for i in range(Pd):
                step(g + i)
            a(f"s_sub_u32 s{S_CNT}, s{S_CNT}, 1")
            a(f"s_cmp_lg_u32 s{S_CNT}, 0")
            a(f"s_cbranch_scc1 LB_loop{nl}")
            nl += 1
            g += n * Pd
        else:
            step(g)
            g += 1
    a("s_nop 15")
    a("s_nop 3")
    LOG2E = "0xbfb8aa3b"
    a(f"s_mov_b32 s20, {LOG2E}")
    tt = V_T
    for j in range(4):
        re = V_ACC + 4*j
        im = V_ACC + 16 + 4*j
        oo = V_ACC + 32 + 4*j
        for h in range(2):
            bf16_round_pair(a, re + 2*h, re + 2*h + 1, tt)
            bf16_round_pair(a, im + 2*h, im + 2*h + 1, tt)
            bf16_round_pair(a, oo + 2*h, oo + 2*h + 1, tt)
        for i in range(4):
            a(f"v_sub_f32 v{re+i}, v{re+i}, v{im+i}")
            src = V_BB + 2*j + i // 2
            if i % 2 == 0:
                a(f"v_lshlrev_b32 v{tt}, 16, v{src}")
            else:
                a(f"v_and_b32 v{tt}, 0xffff0000, v{src}")
            a(f"v_add_f32 v{oo+i}, v{oo+i}, v{tt}")
        for h in range(2):
            bf16_round_pair(a, re + 2*h, re + 2*h + 1, tt)
            bf16_round_pair(a, oo + 2*h, oo + 2*h + 1, tt)
        for i in range(4):
            e = V_T + 2 + i
            a(f"v_mul_f32 v{e}, s20, v{oo+i}")
            a(f"v_exp_f32 v{e}, v{e}")
        a("s_nop 0")
        for i in range(4):
            e = V_T + 2 + i
            a(f"v_add_f32 v{e}, 1.0, v{e}")
            a(f"v_rcp_f32 v{e}, v{e}")
        a("s_nop 0")
        for i in range(4):
            e = V_T + 2 + i
            a(f"v_mul_f32 v{oo+i}, v{oo+i}, v{e}")
        for h in range(2):
            bf16_round_pair(a, oo + 2*h, oo + 2*h + 1, tt)
        for i in range(4):
            a(f"v_mul_f32 v{re+i}, v{re+i}, v{oo+i}")
        for h in range(2):
            bf16_round_pair(a, re + 2*h, re + 2*h + 1, tt)
        for i in range(4):
            src = V_X + 2*j + i // 2
            if i % 2 == 0:
                a(f"v_lshlrev_b32 v{tt}, 16, v{src}")
            else:
                a(f"v_and_b32 v{tt}, 0xffff0000, v{src}")
            a(f"v_add_f32 v{re+i}, v{re+i}, v{tt}")
        p = V_T + 8 + 2*j
        a(f"v_cvt_pk_bf16_f32 v{p}, v{re}, v{re+1}")
        a(f"v_cvt_pk_bf16_f32 v{p+1}, v{re+2}, v{re+3}")
        a(f"buffer_store_dwordx2 v[{p}:{p+1}], v{V_OUT}, s[{S_O}:{S_O+3}], 0 offen offset:{16*j}")
    a.label("LB_end")
    a("s_endpgm")
    return name, 256, 64

WS_PART = 32 << 20
KB2_D = OPT['kb2_d']
def gen_kB2(a):
    name = "gemm2_kernel"
    D = KB2_D
    STG = 32768
    T = 22
    kernel_header(a, name)
    a("""
    s_cmp_ge_u32 s2, 256
    s_cbranch_scc1 LB_end
    s_load_dwordx2 s[6:7], s[0:1], 8       ; Ws_re
    s_load_dwordx2 s[8:9], s[0:1], 16      ; Ws_im
    s_load_dwordx2 s[14:15], s[0:1], 96    ; ws
    v_and_b32 v1, 63, v0                   ; lane
    v_lshrrev_b32 v2, 6, v0                ; wave
    s_nop 0
    v_readfirstlane_b32 s40, v2
    v_and_b32 v2, 3, v2
    s_and_b32 s41, s2, 7                   ; xcd
    s_lshr_b32 s42, s2, 3                  ; idx
    s_and_b32 s43, s41, 3                  ; role
    s_lshr_b32 s41, s41, 2                 ; thalf
    s_lshl_b32 s41, s41, 3
    s_and_b32 s44, s42, 7
    s_add_u32 s41, s41, s44                ; tblk (0..15)
    s_lshr_b32 s42, s42, 3                 ; eblk (0..3)
    s_waitcnt lgkmcnt(0)
    s_cmp_ge_u32 s40, 4
    s_cbranch_scc1 LB_loader
    """)
    S_A, S_B, S_IM, S_O = 16, 20, 24, 28
    S_KA, S_KB, S_WB, S_CNT, S_END, S_STA, S_STB = 44, 45, 46, 47, 48, 49, 50
    V_ACC = 16
    V_FR = 80
    V_RA = 208
    V_RB = 220
    V_LA = 232
    V_LB = 236
    V_OUT = 240
    V_T = 241
    NSETS = (D * STG + 65535) // 65536
    t0, t1 = V_T, V_T + 1
    P = [V_T + 2 + i for i in range(4)]
    Pd = D if D % 2 == 0 else 2 * D

    def emit_steps(step, sig, lbl):
        g = 0
        nl = 0
        while g < T:
            n = 1
            while g + (n + 1) * Pd <= T and all(sig(g + n * Pd + i) == sig(g + i) for i in range(Pd)):
                n += 1
            if n >= 2 and g + Pd <= T:
                a(f"s_mov_b32 s{S_CNT}, {n}")
                a.label(f"{lbl}{nl}")
                for i in range(Pd):
                    step(g + i)
                a(f"s_sub_u32 s{S_CNT}, s{S_CNT}, 1")
                a(f"s_cmp_lg_u32 s{S_CNT}, 0")
                a(f"s_cbranch_scc1 {lbl}{nl}")
                nl += 1
                g += n * Pd
            else:
                step(g)
                g += 1

    frag_pattern(a, P, 1, t0, t1)
    a(f"v_and_b32 v{t0}, 1, v2")
    a(f"v_lshlrev_b32 v{t0}, 13, v{t0}")
    a(f"v_lshrrev_b32 v{t1}, 1, v2")
    a(f"v_lshlrev_b32 v{t1}, 13, v{t1}")
    a(f"v_add_u32 v{t1}, 16384, v{t1}")
    for kk in range(4):
        a(f"v_add_u32 v{V_RA+kk}, v{P[kk]}, v{t0}")
        a(f"v_add_u32 v{V_RB+kk}, v{P[kk]}, v{t1}")
        for st in range(1, NSETS):
            a(f"v_add_u32 v{V_RA+4*st+kk}, {65536*st}, v{V_RA+kk}")
            a(f"v_add_u32 v{V_RB+4*st+kk}, {65536*st}, v{V_RB+kk}")
    a(f"""
    s_lshl_b32 s54, s43, 6
    s_lshl_b32 s55, s41, 2
    s_add_u32 s54, s54, s55
    s_add_u32 s54, s54, s42
    s_lshl_b32 s54, s54, 2
    s_add_u32 s54, s54, s40
    s_lshl_b32 s54, s54, 14
    s_add_u32 s54, s54, {WS_PART}
    v_lshlrev_b32 v{V_OUT}, 4, v1
    """)
    srd_off(a, S_O, 14, 15, "s54", 16384)
    for i in range(64):
        a(f"v_mov_b32 v{V_ACC+i}, 0")

    def reads(g):
        sl = g % D
        base = V_FR + (g % 2) * 64
        st, off = divmod(sl * STG, 65536)
        for kk in range(4):
            b = base + 16 * kk
            a(f"ds_read_b128 v[{b}:{b+3}], v{V_RA+4*st+kk} offset:{off}")
            a(f"ds_read_b128 v[{b+8}:{b+11}], v{V_RB+4*st+kk} offset:{off}")
            a(f"ds_read_b128 v[{b+4}:{b+7}], v{V_RA+4*st+kk} offset:{off+4096}")
            a(f"ds_read_b128 v[{b+12}:{b+15}], v{V_RB+4*st+kk} offset:{off+4096}")

    def csig(g):
        return (g < T - 1, g % D, g % 2)

    def cstep(g):
        a("s_waitcnt lgkmcnt(0)")
        if g < T - 1:
            a("s_barrier")
            reads(g + 1)
        base = V_FR + (g % 2) * 64
        for kk in range(4):
            b = base + 16 * kk
            for mi in range(2):
                for ni in range(2):
                    ac = V_ACC + 16 * (mi * 2 + ni)
                    a(f"v_mfma_f32_32x32x16_bf16 v[{ac}:{ac+15}], v[{b+4*mi}:{b+4*mi+3}], v[{b+8+4*ni}:{b+8+4*ni+3}], v[{ac}:{ac+15}]")

    if OPT['stamp']:
        a("s_memtime s[64:65]")
        a("s_memrealtime s[66:67]")
    a("s_barrier")
    if OPT['stamp']:
        a("s_memtime s[68:69]")
    reads(0)
    emit_steps(cstep, csig, "LB_cl")
    if OPT['stamp']:
        a("s_memtime s[70:71]")
    a("s_nop 15")
    a("s_nop 3")
    for q in range(16):
        r = V_ACC + 4 * q
        if q % 4 == 0 and q > 0:
            a(f"v_add_u32 v{V_OUT}, 4096, v{V_OUT}")
        a(f"buffer_store_dwordx4 v[{r}:{r+3}], v{V_OUT}, s[{S_O}:{S_O+3}], 0 offen offset:{1024*(q%4)}")
    if OPT['stamp']:
        a("s_waitcnt vmcnt(0)")
        a("s_memtime s[72:73]")
        a("s_memrealtime s[74:75]")
        a("s_waitcnt lgkmcnt(0)")
        a("s_cmp_lg_u32 s40, 0")
        a("s_cbranch_scc1 LB_end")
        a("s_lshl_b32 s54, s2, 7")
        a(f"s_add_u32 s54, s54, {60<<20}")
        srd_off(a, S_O, 14, 15, "s54", 128)
        a("v_mov_b32 v3, 0")
        for i in range(6):
            a(f"v_mov_b32 v4, s{64+2*i}")
            a(f"buffer_store_dword v4, v3, s[{S_O}:{S_O+3}], 0 offen offset:{4*i}")
    a.label("LB_end")
    a("s_endpgm")

    a.label("LB_loader")
    a(f"""
    s_mov_b32 s55, {HSTR}
    s_cmp_eq_u32 s43, 3
    s_cselect_b32 s{S_STA}, s55, 8192
    s_cselect_b32 s{S_STB}, s55, 4096
    s_cbranch_scc1 LB_mlp
    s_mul_i32 s51, s43, 21
    s_cmp_gt_u32 s43, 0
    s_cselect_b32 s52, 1, 0
    s_add_u32 s51, s51, s52                ; k0
    s_sub_u32 s53, 22, s52
    s_lshl_b32 s54, s42, 20                ; eblk*128*8192
    s_add_u32 s54, s54, {WS_ABT}
    """)
    srd_off(a, S_A, 14, 15, "s54", 128 * 8192)
    a("s_lshl_b32 s54, s41, 19")
    srd_off(a, S_IM, 8, 9, "s54", 128 * 4096)
    srd_off(a, S_B, 6, 7, "s54", 128 * 4096)
    a("s_branch LB_common")
    a.label("LB_mlp")
    a(f"""
    s_mov_b32 s51, 0
    s_mov_b32 s53, 22
    s_mul_i32 s54, s42, {128*HSTR}
    s_add_u32 s54, s54, {WS_W2T}
    """)
    srd_off(a, S_A, 14, 15, "s54", 128 * HSTR)
    a(f"s_mul_i32 s54, s41, {128*HSTR}")
    a(f"s_add_u32 s54, s54, {WS_H}")
    srd_off(a, S_B, 14, 15, "s54", 128 * HSTR)
    srd_off(a, S_IM, 14, 15, "s54", 128 * HSTR)
    a.label("LB_common")
    a(f"""
    s_mov_b32 s56, s{S_B}
    s_mov_b32 s57, s{S_B+1}
    s_lshr_b32 s60, s2, 3                  ; idx
    s_mul_i32 s60, s60, {OPT['kb2_rotmul']}
    s_and_b32 s60, s60, 31
    s_sub_u32 s62, s60, s53
    s_cmp_ge_u32 s60, s53
    s_cselect_b32 s60, s62, s60
    s_mov_b32 s61, 0
    """)
    vrow = V_T + 6
    for j in range(4):
        a(f"v_lshrrev_b32 v{vrow}, 3, v1")
        a(f"v_lshl_add_u32 v{vrow}, v2, 5, v{vrow}")
        a(f"v_add_u32 v{vrow}, {8*j}, v{vrow}")
        dma_voff(a, V_LA + j, 1, vrow, S_STA, t0, t1)
        dma_voff(a, V_LB + j, 1, vrow, S_STB, t0, t1)
    a("s_and_b32 s40, s40, 3")
    a(f"s_lshl_b32 s{S_WB}, s40, 12")

    def dma(stage):
        sl = stage % D
        a(f"""
        s_cmp_ge_u32 s61, s53
        s_cselect_b32 s{S_A+2}, 0, s{S_A+2}
        s_cselect_b32 s{S_B+2}, 0, s{S_B+2}
        s_add_u32 s62, s51, s60
        s_lshl_b32 s{S_KA}, s62, 7
        s_and_b32 s{S_KB}, s{S_KA}, 4095
        s_cmp_lt_u32 s62, 32
        s_cselect_b32 s{S_B}, s56, s{S_IM}
        s_cselect_b32 s{S_B+1}, s57, s{S_IM+1}
        """)
        for j in range(4):
            a(f"s_add_u32 m0, s{S_WB}, {sl*STG + j*1024}")
            a("s_nop 0")
            a(f"buffer_load_dwordx4 v{V_LA+j}, s[{S_A}:{S_A+3}], s{S_KA} offen lds")
        for j in range(4):
            a(f"s_add_u32 m0, s{S_WB}, {sl*STG + 16384 + j*1024}")
            a("s_nop 0")
            a(f"buffer_load_dwordx4 v{V_LB+j}, s[{S_B}:{S_B+3}], s{S_KB} offen lds")
        a(f"""
        s_add_u32 s61, s61, 1
        s_add_u32 s60, s60, 1
        s_cmp_eq_u32 s60, s53
        s_cselect_b32 s60, 0, s60
        """)

    def lsig(g):
        n = (min(g + D - 1, T - 1) - (g + 1)) * 8 if g < T - 1 else -1
        return (g + D < T, n, g % D)

    def lstep(g):
        if g < T - 1:
            n = (min(g + D - 1, T - 1) - (g + 1)) * 8
            a(f"s_waitcnt vmcnt({n})")
            a("s_barrier")
            if g + D < T:
                dma(g + D)

    for s_ in range(D):
        dma(s_)
    a(f"s_waitcnt vmcnt({(D-1)*8})")
    a("s_barrier")
    emit_steps(lstep, lsig, "LB_ll")
    a("s_endpgm")
    return name, 256, 100

def gen_kR(a):
    name = "reduce_kernel"
    kernel_header(a, name)
    a("""
    s_cmp_ge_u32 s2, 256
    s_cbranch_scc1 LR_end
    s_load_dwordx2 s[4:5], s[0:1], 0       ; x
    s_load_dwordx2 s[10:11], s[0:1], 72    ; b2
    s_load_dwordx2 s[12:13], s[0:1], 80    ; out
    s_load_dwordx2 s[14:15], s[0:1], 96    ; ws
    v_and_b32 v1, 63, v0                   ; lane
    v_lshrrev_b32 v2, 6, v0
    s_lshr_b32 s41, s2, 2                  ; tile
    s_and_b32 s40, s2, 3
    s_and_b32 s42, s41, 3                  ; eblk
    s_lshr_b32 s41, s41, 2                 ; tblk
    s_waitcnt lgkmcnt(0)
    """)
    S_P, S_X, S_B2, S_O = 16, 24, 28, 32
    a("s_lshl_b32 s54, s2, 14")
    a(f"s_add_u32 s54, s54, {WS_PART}")
    srd_off(a, S_P, 14, 15, "s54", 16 << 20)
    srd_from(a, S_X, 4, 5, 2048 * 1024)
    srd_from(a, S_B2, 10, 11, 1024)
    srd_from(a, S_O, 12, 13, 2048 * 1024)
    V_P = 16
    V_X = 80
    V_BB = 88
    V_OUT = 96
    V_PO = 97
    V_T = 100
    t0, t1 = V_T, V_T + 1
    a(f"v_lshlrev_b32 v{V_PO}, 12, v2")
    a(f"v_lshl_add_u32 v{V_PO}, v1, 4, v{V_PO}")
    for r in range(4):
        a(f"s_mov_b32 s44, {r * (4 << 20)}")
        for j in range(4):
            d = V_P + 16 * r + 4 * j
            a(f"buffer_load_dwordx4 v[{d}:{d+3}], v{V_PO}, s[{S_P}:{S_P+3}], s44 offen offset:{1024*j}")
    a(f"""
    s_and_b32 s45, s40, 1
    s_lshl_b32 s45, s45, 6
    s_lshl_b32 s46, s42, 7
    s_add_u32 s45, s45, s46
    s_lshr_b32 s46, s40, 1
    s_lshl_b32 s46, s46, 6
    s_lshl_b32 s47, s41, 7
    s_add_u32 s46, s46, s47
    v_lshrrev_b32 v{t0}, 1, v2             ; mi
    v_lshlrev_b32 v{t0}, 5, v{t0}
    v_lshrrev_b32 v{t1}, 5, v1
    v_lshl_add_u32 v{t0}, v{t1}, 2, v{t0}
    v_add_u32 v{t0}, s45, v{t0}
    v_lshlrev_b32 v{t0}, 1, v{t0}          ; ecol*2
    v_and_b32 v{t1}, 1, v2                 ; ni
    v_lshlrev_b32 v{t1}, 5, v{t1}
    v_and_b32 v{V_OUT}, 31, v1
    v_add_u32 v{t1}, v{t1}, v{V_OUT}
    v_add_u32 v{t1}, s46, v{t1}
    v_lshl_add_u32 v{V_OUT}, v{t1}, 10, v{t0}
    """)
    for j in range(4):
        a(f"buffer_load_dwordx2 v[{V_X+2*j}:{V_X+2*j+1}], v{V_OUT}, s[{S_X}:{S_X+3}], 0 offen offset:{16*j}")
        a(f"buffer_load_dwordx2 v[{V_BB+2*j}:{V_BB+2*j+1}], v{t0}, s[{S_B2}:{S_B2+3}], 0 offen offset:{16*j}")
    a("s_mov_b32 s20, 0xbfb8aa3b")
    a("s_waitcnt vmcnt(0)")
    tt = V_T + 2
    for j in range(4):
        re = V_P + 4*j
        oo = V_P + 48 + 4*j
        for i in range(4):
            a(f"v_add_f32 v{re+i}, v{re+i}, v{re+16+i}")
            a(f"v_add_f32 v{re+i}, v{re+i}, v{re+32+i}")
        for h in range(2):
            bf16_round_pair(a, re + 2*h, re + 2*h + 1, tt)
            bf16_round_pair(a, oo + 2*h, oo + 2*h + 1, tt)
        for i in range(4):
            src = V_BB + 2*j + i // 2
            if i % 2 == 0:
                a(f"v_lshlrev_b32 v{tt}, 16, v{src}")
            else:
                a(f"v_and_b32 v{tt}, 0xffff0000, v{src}")
            a(f"v_add_f32 v{oo+i}, v{oo+i}, v{tt}")
        for h in range(2):
            bf16_round_pair(a, oo + 2*h, oo + 2*h + 1, tt)
        for i in range(4):
            e = V_T + 4 + i
            a(f"v_mul_f32 v{e}, s20, v{oo+i}")
            a(f"v_exp_f32 v{e}, v{e}")
        a("s_nop 0")
        for i in range(4):
            e = V_T + 4 + i
            a(f"v_add_f32 v{e}, 1.0, v{e}")
            a(f"v_rcp_f32 v{e}, v{e}")
        a("s_nop 0")
        for i in range(4):
            e = V_T + 4 + i
            a(f"v_mul_f32 v{oo+i}, v{oo+i}, v{e}")
        for h in range(2):
            bf16_round_pair(a, oo + 2*h, oo + 2*h + 1, tt)
        for i in range(4):
            a(f"v_mul_f32 v{re+i}, v{re+i}, v{oo+i}")
        for h in range(2):
            bf16_round_pair(a, re + 2*h, re + 2*h + 1, tt)
        for i in range(4):
            src = V_X + 2*j + i // 2
            if i % 2 == 0:
                a(f"v_lshlrev_b32 v{tt}, 16, v{src}")
            else:
                a(f"v_and_b32 v{tt}, 0xffff0000, v{src}")
            a(f"v_add_f32 v{re+i}, v{re+i}, v{tt}")
        p = V_T + 8 + 2*j
        a(f"v_cvt_pk_bf16_f32 v{p}, v{re}, v{re+1}")
        a(f"v_cvt_pk_bf16_f32 v{p+1}, v{re+2}, v{re+3}")
        a(f"buffer_store_dwordx2 v[{p}:{p+1}], v{V_OUT}, s[{S_O}:{S_O+3}], 0 offen offset:{16*j}")
    a.label("LR_end")
    a("s_endpgm")
    return name, 120, 64

def main(out):
    a = Asm()
    hdr = f"""; generated by gen/gen.py
; @launch kernel=prep_kernel grid=(1216,1,1) block=(256,1,1) lds=0
; @launch kernel=gemm1_kernel grid=(256,1,1) block=(256,1,1) lds={KA_D*KA_STAGE}
; @launch kernel=gemm2_kernel grid=(256,1,1) block=(512,1,1) lds={KB2_D*32768}
; @launch kernel=reduce_kernel grid=(256,1,1) block=(256,1,1) lds=0
.amdgcn_target "amdgcn-amd-amdhsa--gfx950"
.text
"""
    ks = [gen_k0(a), gen_kA(a), gen_kB2(a), gen_kR(a)]
    txt = hdr + a.text() + '.section .rodata,"a"\n'
    for (n, v, s) in ks:
        txt += kernel_desc(n, v, s)
    open(out, "w").write(txt)

if __name__ == "__main__":
    main(sys.argv[1] if len(sys.argv) > 1 else "recurrent_scan__spectral_fnet__mixer_channel_mlp__prompt.s")
```

```python
import sys, math, os, json, struct

OPT = dict(stamp=0, rot_t=3, rot_e=0, pf=1, prio=0)
OPT.update(json.loads(os.environ.get('GEN_OPT', '{}')))

KNAME = "recurrent_scan__spectral_fnet__mixer_channel_mlp__prompt_kernel"
WS_FLAG = 0
WS_XN = 0x100000
WS_Y = 0x300000
WS_AB = 0x600000
WS_H = 0xA00000
WS_P = 0x1000000
WS_ST = 0x3000000
WS_SIZE = 268435456
SC = "sc0 sc1"
SP = "sc1"


def f32hex(x):
    return "0x%08x" % struct.unpack("<I", struct.pack("<f", x))[0]


class Asm:
    def __init__(self):
        self.lines = []
        self.nl = 0

    def __call__(self, s):
        for l in s.strip().split("\n"):
            self.lines.append("    " + l.strip())

    def label(self, l):
        self.lines.append(l + ":")

    def newlabel(self, p="L"):
        self.nl += 1
        return f"{p}_{self.nl}"

    def raw(self, s):
        self.lines.append(s)

    def text(self):
        return "\n".join(self.lines) + "\n"


def srd_from(a, d, lo, size):
    a(f"s_mov_b32 s{d}, s{lo}")
    a(f"s_and_b32 s{d+1}, s{lo+1}, 0xffff")
    a(f"s_mov_b32 s{d+2}, {size}")
    a(f"s_mov_b32 s{d+3}, 0x20000")


def srd_off(a, d, lo, off, size):
    a(f"s_add_u32 s{d}, s{lo}, {off}")
    a(f"s_addc_u32 s{d+1}, s{lo+1}, 0")
    a(f"s_and_b32 s{d+1}, s{d+1}, 0xffff")
    a(f"s_mov_b32 s{d+2}, {size}")
    a(f"s_mov_b32 s{d+3}, 0x20000")


DPP = "row_mask:0xf bank_mask:0xf"


def wave_reduce2(a, vs, ts):
    def each(fmt):
        for v, t in zip(vs, ts):
            a(fmt.format(v=v, t=t))
    a("s_nop 1")
    each("v_add_f32_dpp v{t}, v{v}, v{v} quad_perm:[1,0,3,2] " + DPP)
    a("s_nop 1")
    each("v_add_f32_dpp v{v}, v{t}, v{t} quad_perm:[2,3,0,1] " + DPP)
    a("s_nop 1")
    each("v_add_f32_dpp v{t}, v{v}, v{v} row_half_mirror " + DPP)
    a("s_nop 1")
    each("v_add_f32_dpp v{v}, v{t}, v{t} row_mirror " + DPP)
    a("s_nop 1")
    each("ds_swizzle_b32 v{t}, v{v} offset:0x401F")
    a("s_waitcnt lgkmcnt(0)")
    each("v_add_f32 v{v}, v{v}, v{t}")
    each("v_mov_b32 v{t}, v{v}")
    a("s_nop 1")
    each("v_permlane32_swap_b32 v{v}, v{t}")
    a("s_nop 1")
    each("v_add_f32 v{v}, v{v}, v{t}")


def layernorm_rows(a, rows):
    def each(fn):
        for r in rows:
            fn(r)
    def S(r, i):
        return r['tmp'][i]
    each(lambda r: a(f"v_add_f32 v{S(r,0)}, v{r['f'][0]}, v{r['f'][1]}"))
    for i in range(2, 8):
        each(lambda r: a(f"v_add_f32 v{S(r,0)}, v{S(r,0)}, v{r['f'][i]}"))
    wave_reduce2(a, [S(r, 0) for r in rows], [S(r, 1) for r in rows])
    each(lambda r: a(f"v_mul_f32 v{S(r,2)}, 0x3b000000, v{S(r,0)}"))
    each(lambda r: a(f"v_sub_f32 v{S(r,4)}, v{r['f'][0]}, v{S(r,2)}"))
    each(lambda r: a(f"v_mul_f32 v{S(r,3)}, v{S(r,4)}, v{S(r,4)}"))
    for i in range(1, 8):
        each(lambda r: a(f"v_sub_f32 v{S(r,4)}, v{r['f'][i]}, v{S(r,2)}"))
        each(lambda r: a(f"v_fmac_f32 v{S(r,3)}, v{S(r,4)}, v{S(r,4)}"))
    wave_reduce2(a, [S(r, 3) for r in rows], [S(r, 1) for r in rows])
    each(lambda r: a(f"v_mul_f32 v{S(r,3)}, 0x3b000000, v{S(r,3)}"))
    each(lambda r: a(f"v_cvt_pk_bf16_f32 v{S(r,1)}, v{S(r,2)}, v{S(r,3)}"))
    each(lambda r: a(f"v_lshlrev_b32 v{S(r,2)}, 16, v{S(r,1)}"))
    each(lambda r: a(f"v_and_b32 v{S(r,3)}, 0xffff0000, v{S(r,1)}"))
    each(lambda r: a(f"v_add_f32 v{S(r,3)}, 0x3727c5ac, v{S(r,3)}"))
    each(lambda r: a(f"v_cvt_pk_bf16_f32 v{S(r,1)}, v{S(r,3)}, v{S(r,3)}"))
    each(lambda r: a(f"v_lshlrev_b32 v{S(r,3)}, 16, v{S(r,1)}"))
    each(lambda r: a(f"v_sqrt_f32 v{S(r,3)}, v{S(r,3)}"))
    a("s_nop 0")
    each(lambda r: a(f"v_cvt_pk_bf16_f32 v{S(r,1)}, v{S(r,3)}, v{S(r,3)}"))
    each(lambda r: a(f"v_lshlrev_b32 v{S(r,3)}, 16, v{S(r,1)}"))
    each(lambda r: a(f"v_rcp_f32 v{S(r,5)}, v{S(r,3)}"))
    a("s_nop 0")
    for i in range(0, 8, 2):
        def body(r):
            f, p, t, mean, rr = r['f'], r['p'], S(r, 1), S(r, 2), S(r, 5)
            a(f"v_sub_f32 v{f[i]}, v{f[i]}, v{mean}")
            a(f"v_sub_f32 v{f[i+1]}, v{f[i+1]}, v{mean}")
            a(f"v_cvt_pk_bf16_f32 v{t}, v{f[i]}, v{f[i+1]}")
            a(f"v_lshlrev_b32 v{f[i]}, 16, v{t}")
            a(f"v_and_b32 v{f[i+1]}, 0xffff0000, v{t}")
            a(f"v_mul_f32 v{f[i]}, v{f[i]}, v{rr}")
            a(f"v_mul_f32 v{f[i+1]}, v{f[i+1]}, v{rr}")
            a(f"v_cvt_pk_bf16_f32 v{p[i//2]}, v{f[i]}, v{f[i+1]}")
            a(f"v_lshlrev_b32 v{f[i]}, 16, v{p[i//2]}")
            a(f"v_and_b32 v{f[i+1]}, 0xffff0000, v{p[i//2]}")
        each(body)


def frag_pattern(a, dst4, t0, t1):
    a(f"v_and_b32 v{t0}, 31, v1")
    a(f"v_lshrrev_b32 v{t1}, 1, v{t0}")
    a(f"v_and_b32 v{t1}, 7, v{t1}")
    a(f"v_lshlrev_b32 v{t0}, 7, v{t0}")
    for kk in range(4):
        d = dst4[kk]
        a(f"v_lshrrev_b32 v{d}, 5, v1")
        a(f"v_add_u32 v{d}, {2*kk}, v{d}")
        a(f"v_xor_b32 v{d}, v{d}, v{t1}")
        a(f"v_lshl_add_u32 v{d}, v{d}, 4, v{t0}")


def bf16_round_pair(a, x0, x1, t):
    a(f"v_cvt_pk_bf16_f32 v{t}, v{x0}, v{x1}")
    a(f"v_lshlrev_b32 v{x0}, 16, v{t}")
    a(f"v_and_b32 v{x1}, 0xffff0000, v{t}")


P_X, P_WSR, P_WSI, P_WDR, P_WDI, P_W1, P_B1, P_W2, P_B2, P_OUT, P_DBG, P_WS = 4, 6, 8, 10, 12, 16, 18, 20, 22, 24, 26, 28
S_WAVE, S_XCD, S_IDX, S_R, S_J, S_ROLE, S_TT, S_ET, S_U0, S_CNT, S_MLP = 30, 31, 32, 33, 34, 35, 36, 37, 38, 39, 40
S_TAG = 41
S_T0, S_T1 = 42, 43
R_WS, R_A, R_B = 44, 48, 52
R_B5 = 56
S_X = 76
S_STAMP = 60
NSTAMP = [0]


def stamp(a, name):
    if not OPT['stamp']:
        return
    i = NSTAMP[0]
    NSTAMP[0] += 1
    assert i < 16
    a(f"s_memrealtime s[{S_T0}:{S_T1}]")
    a("s_waitcnt lgkmcnt(0)")
    a(f"s_mov_b32 s{S_STAMP+i}, s{S_T0}")


def flag_store(a, phase, vt0, vt1):
    a(f"""
    s_lshl_b32 s{S_T0}, s2, 6
    s_add_u32 s{S_T0}, s{S_T0}, {WS_FLAG + phase*16384}
    v_mov_b32 v{vt0}, s{S_T0}
    v_mov_b32 v{vt1}, s{S_TAG}
    s_mov_b64 exec, 1
    buffer_store_dword v{vt1}, v{vt0}, s[{R_WS}:{R_WS+3}], 0 offen {SC}
    s_mov_b64 exec, -1
    """)


def poll(a, voff, n, vt):
    lp = a.newlabel("Lpoll")
    dn = a.newlabel("Lpdone")
    a(f"s_mov_b32 s{S_T1}, 400000")
    a.label(lp)
    for i in range(n):
        if i == 0:
            a(f"buffer_load_dword v{vt}, v{voff}, s[{R_WS}:{R_WS+3}], 0 offen {SC}")
        else:
            a(f"s_mov_b32 s{S_T0}, {4096*i}")
            a(f"buffer_load_dword v{vt+i}, v{voff}, s[{R_WS}:{R_WS+3}], s{S_T0} offen {SC}")
    a("s_waitcnt vmcnt(0)")
    for i in range(n):
        a(f"v_xor_b32 v{vt+i}, s{S_TAG}, v{vt+i}")
    for i in range(1, n):
        a(f"v_or_b32 v{vt}, v{vt}, v{vt+i}")
    a(f"v_cmp_ne_u32 vcc, 0, v{vt}")
    a("s_nop 4")
    a(f"s_cbranch_vccz {dn}")
    a("s_sleep 1")
    a(f"s_sub_u32 s{S_T1}, s{S_T1}, 1")
    a(f"s_cmp_lg_u32 s{S_T1}, 0")
    a(f"s_cbranch_scc1 {lp}")
    a.label(dn)


def dma(a, m0base_sgpr, m0imm, voff, srd, soff, sc=""):
    a(f"s_add_u32 m0, s{m0base_sgpr}, {m0imm}")
    a("s_nop 0")
    a(f"buffer_load_dwordx4 v{voff}, s[{srd}:{srd+3}], s{soff} offen {sc} lds")


def gen(a):
    a.raw(f".globl {KNAME}")
    a.raw(".p2align 8")
    a.raw(f".type {KNAME},@function")
    a.label(KNAME)
    a(f"""
    s_cmp_ge_u32 s2, 256
    s_cbranch_scc1 L_END
    s_load_dwordx16 s[4:19], s[0:1], 0
    s_load_dwordx8 s[20:27], s[0:1], 64
    s_load_dwordx2 s[28:29], s[0:1], 96
    v_and_b32 v1, 63, v0
    v_lshrrev_b32 v2, 6, v0
    s_nop 0
    v_readfirstlane_b32 s{S_WAVE}, v2
    s_and_b32 s{S_XCD}, s2, 7
    s_lshr_b32 s{S_IDX}, s2, 3
    s_lshr_b32 s{S_R}, s{S_IDX}, 4
    s_lshl_b32 s{S_T0}, s{S_XCD}, 1
    s_add_u32 s{S_R}, s{S_R}, s{S_T0}
    s_and_b32 s{S_J}, s{S_IDX}, 15
    s_cmp_ge_u32 s{S_J}, 7
    s_cselect_b32 s{S_MLP}, 1, 0
    s_cselect_b32 s{S_T0}, 7, 0
    s_cselect_b32 s{S_T1}, 7, 4
    s_sub_u32 s{S_T0}, s{S_J}, s{S_T0}          ; g
    s_mul_i32 s{S_U0}, s{S_T0}, 5
    s_cmp_lt_u32 s{S_T0}, s{S_T1}
    s_cselect_b32 s{S_CNT}, 5, 4
    s_sub_i32 s{S_T0}, s{S_T0}, s{S_T1}
    s_max_i32 s{S_T0}, s{S_T0}, 0
    s_sub_u32 s{S_U0}, s{S_U0}, s{S_T0}
    s_and_b32 s{S_ROLE}, s{S_XCD}, 3
    s_lshr_b32 s{S_TT}, s{S_XCD}, 2
    s_lshl_b32 s{S_TT}, s{S_TT}, 3
    s_and_b32 s{S_T0}, s{S_IDX}, 7
    s_add_u32 s{S_TT}, s{S_TT}, s{S_T0}
    s_lshr_b32 s{S_ET}, s{S_IDX}, 3
    s_mov_b32 s{S_TAG}, 0
    s_waitcnt lgkmcnt(0)
    """)
    srd_from(a, R_WS, P_WS, WS_SIZE)
    a(f"s_cmp_ge_u32 s{S_WAVE}, 4")
    a("s_cbranch_scc1 L_LOADER1")

    stamp(a, "start")
    srd_from(a, R_A, P_X, 2048 * 1024)
    srd_from(a, R_B, P_DBG, 256)
    a(f"""
    s_lshl_b32 s{S_T0}, s{S_J}, 3
    s_lshl_b32 s{S_T1}, s{S_WAVE}, 1
    s_add_u32 s{S_X}, s{S_T0}, s{S_T1}
    s_lshl_b32 s{S_T0}, s{S_R}, 7
    s_add_u32 s{S_T0}, s{S_T0}, s{S_X}
    s_lshl_b32 s{S_T0}, s{S_T0}, 10
    v_lshlrev_b32 v3, 4, v1
    buffer_load_dwordx4 v[16:19], v3, s[{R_A}:{R_A+3}], s{S_T0} offen
    buffer_load_dwordx4 v[20:23], v3, s[{R_A}:{R_A+3}], s{S_T0} offen offset:1024
    """)
    a(f"""
    s_or_b32 s{S_T0}, s2, s{S_WAVE}
    s_cmp_lg_u32 s{S_T0}, 0
    s_cbranch_scc1 L_NOTAG
    s_memrealtime s[{S_T0}:{S_T1}]
    s_waitcnt lgkmcnt(0)
    s_lshl_b32 s{S_T0}, s{S_T0}, 2
    s_or_b32 s{S_T0}, s{S_T0}, 3
    v_mov_b32 v4, s{S_T0}
    v_mov_b32 v5, 0
    s_mov_b64 exec, 1
    buffer_store_dword v4, v5, s[{R_B}:{R_B+3}], 0 offen {SC}
    s_mov_b64 exec, -1
    """)
    a.label("L_NOTAG")
    a(f"""
    s_lshr_b32 s{S_T0}, s{S_X}, 1
    s_and_b32 s{S_T0}, s{S_T0}, 7
    v_and_b32 v4, 7, v1
    v_xor_b32 v4, s{S_T0}, v4
    v_lshlrev_b32 v4, 4, v4
    v_lshrrev_b32 v5, 3, v1
    v_lshl_add_u32 v4, v5, 14, v4
    s_lshl_b32 s{S_T0}, s{S_R}, 17
    s_lshl_b32 s{S_T1}, s{S_X}, 7
    s_add_u32 s{S_T0}, s{S_T0}, s{S_T1}
    s_add_u32 s{S_X+1}, s{S_T0}, {WS_XN}
    s_add_u32 s{S_X+2}, s{S_T0}, {WS_Y}
    v_mov_b32 v5, 0
    s_waitcnt vmcnt(0)
    buffer_load_dword v6, v5, s[{R_B}:{R_B+3}], 0 offen {SC}
    """)
    rows = []
    for ri in range(2):
        f = list(range(24 + 8 * ri, 32 + 8 * ri))
        src = 16 + 4 * ri
        for i in range(4):
            a(f"v_lshlrev_b32 v{f[2*i]}, 16, v{src+i}")
            a(f"v_and_b32 v{f[2*i+1]}, 0xffff0000, v{src+i}")
        rows.append(dict(f=f, p=[48 + 4 * ri + i for i in range(4)], tmp=list(range(64 + 8 * ri, 70 + 8 * ri))))
    layernorm_rows(a, rows)
    a(f"buffer_store_dwordx4 v[48:51], v4, s[{R_WS}:{R_WS+3}], s{S_X+1} offen {SP}")
    a(f"buffer_store_dwordx4 v[52:55], v4, s[{R_WS}:{R_WS+3}], s{S_X+1} offen offset:128 {SP}")
    for ri in range(2):
        rows[ri]['p'] = [56 + 4 * ri + i for i in range(4)]
    layernorm_rows(a, rows)
    a(f"buffer_store_dwordx4 v[56:59], v4, s[{R_WS}:{R_WS+3}], s{S_X+2} offen {SP}")
    a(f"buffer_store_dwordx4 v[60:63], v4, s[{R_WS}:{R_WS+3}], s{S_X+2} offen offset:128 {SP}")
    V_ACC, V_FR = 16, 96
    V_PA, V_RA, V_PB, V_RB = 144, 148, 152, 156
    V_T = 160
    P = [V_PB + i for i in range(4)]
    frag_pattern(a, P, V_T, V_T + 1)
    a(f"v_lshlrev_b32 v{V_T}, 12, v2")
    for kk in range(4):
        a(f"v_add_u32 v{V_PA+kk}, v{P[kk]}, v{V_T}")
        a(f"v_mov_b32 v{V_RA+kk}, v{V_PA+kk}")
        a(f"v_add_u32 v{V_PB+kk}, 81920, v{V_PB+kk}")
    a(f"""
    v_lshrrev_b32 v{V_T}, 5, v1             ; g>>1
    v_lshlrev_b32 v{V_T}, 3, v{V_T}
    v_bfe_u32 v{V_T+1}, v1, 2, 2            ; r
    v_add_u32 v{V_T}, v{V_T}, v{V_T+1}
    s_movk_i32 s{S_T0}, 320
    v_mul_lo_u32 v{V_T}, v{V_T}, s{S_T0}
    v_bfe_u32 v{V_T+1}, v1, 4, 1            ; g&1
    v_lshl_add_u32 v{V_T}, v{V_T+1}, 5, v{V_T}
    v_and_b32 v{V_T+1}, 3, v1               ; c
    v_lshl_add_u32 v{V_T}, v{V_T+1}, 3, v{V_T}
    v_add_u32 v{V_T}, 81920, v{V_T}
    s_cmp_eq_u32 s{S_MLP}, 1
    s_cselect_b64 vcc, -1, 0
    s_nop 1
    v_cndmask_b32 v{V_PB}, v{V_PB}, v{V_T}, vcc
    """)
    for kk in range(4):
        a(f"v_mov_b32 v{V_RB+kk}, v{V_PB+kk}")
    a("s_waitcnt vmcnt(0)")
    a(f"v_readfirstlane_b32 s{S_TAG}, v6")
    for i in range(80):
        a(f"v_mov_b32 v{V_ACC+i}, 0")
    stamp(a, "LN done")
    a("s_barrier")
    a(f"s_cmp_lg_u32 s{S_WAVE}, 0")
    a("s_cbranch_scc1 L_S1DONE")
    a(f"s_mov_b32 s{S_T1}, 400000")
    a.label("L_TAGPOLL")
    a(f"""
    s_cmp_lg_u32 s{S_TAG}, 0
    s_cbranch_scc1 L_TAGOK
    buffer_load_dword v6, v5, s[{R_B}:{R_B+3}], 0 offen {SC}
    s_waitcnt vmcnt(0)
    v_readfirstlane_b32 s{S_TAG}, v6
    s_sub_u32 s{S_T1}, s{S_T1}, 1
    s_cmp_lg_u32 s{S_T1}, 0
    s_cbranch_scc1 L_TAGPOLL
    """)
    a.label("L_TAGOK")
    flag_store(a, 1, V_T, V_T + 1)
    a(f"""
    s_and_b32 s{S_T0}, s2, 0x87
    v_and_b32 v{V_T}, 15, v1
    v_lshlrev_b32 v{V_T}, 3, v{V_T}
    v_or_b32 v{V_T}, s{S_T0}, v{V_T}
    v_lshlrev_b32 v{V_T}, 6, v{V_T}
    v_add_u32 v{V_T}, {WS_FLAG + 16384}, v{V_T}
    """)
    poll(a, V_T, 1, V_T + 1)
    a.label("L_S1DONE")
    stamp(a, "S1 done")
    a("s_barrier")
    S_G, S_SA, S_SB = S_X, S_X + 1, S_X + 2
    a(f"s_mov_b32 s{S_G}, 0")
    a(f"s_mov_b32 s{S_SA}, 0")
    a(f"s_mov_b32 s{S_SB}, 0")
    a(f"s_cmp_eq_u32 s{S_MLP}, 1")
    a("s_cbranch_scc1 L_P1_MLP")

    def p1_loop(mlp):
        tagn = "M" if mlp else "D"
        nrd = 11 if mlp else 6

        def reads(kk, buf):
            base = V_FR + buf * 24
            a(f"ds_read_b128 v[{base}:{base+3}], v{V_RA+kk}")
            for u in range(5):
                b = base + 4 + 4 * u
                if mlp:
                    a(f"ds_read_b64_tr_b16 v[{b}:{b+1}], v{V_RB} offset:{u*64 + kk*5120}")
                    a(f"ds_read_b64_tr_b16 v[{b+2}:{b+3}], v{V_RB} offset:{u*64 + kk*5120 + 1280}")
                else:
                    a(f"ds_read_b128 v[{b}:{b+3}], v{V_RB+kk} offset:{u*4096}")

        def mfmas(buf):
            base = V_FR + buf * 24
            for u in range(5):
                acc = f"v[{V_ACC+16*u}:{V_ACC+16*u+15}]"
                act = f"v[{base}:{base+3}]"
                wgt = f"v[{base+4+4*u}:{base+7+4*u}]"
                if mlp:
                    a(f"v_mfma_f32_32x32x16_bf16 {acc}, {wgt}, {act}, {acc}")
                else:
                    a(f"v_mfma_f32_32x32x16_bf16 {acc}, {act}, {wgt}, {acc}")

        a("s_barrier")
        stamp(a, "L0") if not mlp else None
        reads(0, 0)
        a.label(f"L_P1{tagn}_LOOP")
        for kk in range(3):
            reads(kk + 1, (kk + 1) % 2)
            a(f"s_waitcnt lgkmcnt({nrd})")
            mfmas(kk % 2)
        a("s_waitcnt lgkmcnt(0)")
        a("s_barrier")
        a(f"s_cmp_eq_u32 s{S_G}, 7")
        a(f"s_cbranch_scc1 L_P1{tagn}_LAST")
        a(f"""
        s_add_u32 s{S_SA}, s{S_SA}, 16384
        s_cmp_eq_u32 s{S_SA}, 81920
        s_cselect_b32 s{S_SA}, 0, s{S_SA}
        s_add_u32 s{S_SB}, s{S_SB}, 20480
        s_cmp_eq_u32 s{S_SB}, 81920
        s_cselect_b32 s{S_SB}, 0, s{S_SB}
        """)
        for kk in range(4):
            a(f"v_add_u32 v{V_RA+kk}, s{S_SA}, v{V_PA+kk}")
        for kk in range(1 if mlp else 4):
            a(f"v_add_u32 v{V_RB+kk}, s{S_SB}, v{V_PB+kk}")
        reads(0, 0)
        mfmas(1)
        a(f"s_add_u32 s{S_G}, s{S_G}, 1")
        a(f"s_branch L_P1{tagn}_LOOP")
        a.label(f"L_P1{tagn}_LAST")
        mfmas(1)
        if not mlp:
            a(f"""
            v_and_b32 v{V_T}, 31, v1
            v_bfe_u32 v{V_T+1}, v1, 1, 3
            v_and_b32 v{V_T+2}, 1, v2
            v_lshlrev_b32 v{V_T+2}, 2, v{V_T+2}
            v_xor_b32 v{V_T+1}, v{V_T+1}, v{V_T+2}
            v_lshlrev_b32 v{V_T}, 7, v{V_T}
            v_lshrrev_b32 v{V_T+2}, 1, v2
            v_lshl_add_u32 v{V_T}, v{V_T+2}, 12, v{V_T}
            v_lshrrev_b32 v{V_T+2}, 5, v1
            v_lshl_add_u32 v{V_T}, v{V_T+2}, 3, v{V_T}
            """)
            for q in range(4):
                a(f"v_xor_b32 v{V_T+4+q}, {q}, v{V_T+1}")
                a(f"v_lshl_add_u32 v{V_T+4+q}, v{V_T+4+q}, 4, v{V_T}")
        else:
            a(f"""
            v_and_b32 v{V_T}, 31, v1
            v_lshl_add_u32 v{V_T}, v2, 5, v{V_T}
            s_movk_i32 s{S_T0}, 336
            v_mul_lo_u32 v{V_T}, v{V_T}, s{S_T0}
            v_lshrrev_b32 v{V_T+2}, 5, v1
            v_lshl_add_u32 v{V_T+4}, v{V_T+2}, 3, v{V_T}
            """)
        a("s_nop 7")
        for u in range(5):
            for q in range(4):
                r = V_ACC + 16 * u + 4 * q
                p = V_FR + 2 * ((u * 4 + q) % 8)
                a(f"v_cvt_pk_bf16_f32 v{p}, v{r}, v{r+1}")
                a(f"v_cvt_pk_bf16_f32 v{p+1}, v{r+2}, v{r+3}")
                if mlp:
                    a(f"ds_write_b64 v{V_T+4}, v[{p}:{p+1}] offset:{u*64 + q*16}")
                else:
                    a(f"ds_write_b64 v{V_T+4+q}, v[{p}:{p+1}] offset:{u*8192}")
        a("s_waitcnt lgkmcnt(0)")
        a("s_branch L_EPI1")

    p1_loop(False)
    a.label("L_P1_MLP")
    p1_loop(True)

    a.label("L_LOADER1")
    V_LA, V_LB, V_LI = 16, 20, 26
    S_W1K, S_AOFF, S_BK, S_BST = S_X, S_X + 1, S_X + 2, S_X + 3
    a(f"""
    s_sub_u32 s{S_WAVE}, s{S_WAVE}, 4
    s_lshl_b32 s{S_W1K}, s{S_WAVE}, 10
    v_and_b32 v2, 3, v2
    v_lshlrev_b32 v{V_LA}, 4, v1
    v_lshl_add_u32 v{V_LA}, v2, 10, v{V_LA}
    v_add_u32 v{V_LA+1}, 4096, v{V_LA}
    v_add_u32 v{V_LA+2}, 8192, v{V_LA}
    v_add_u32 v{V_LA+3}, 12288, v{V_LA}
    s_mov_b32 s{S_BK}, 0
    s_cmp_eq_u32 s{S_MLP}, 1
    s_cbranch_scc1 L_LD1_MLP
    """)
    a(f"""
    v_lshrrev_b32 v3, 3, v1
    v_lshl_add_u32 v3, v2, 3, v3
    v_bfe_u32 v4, v3, 1, 3
    v_and_b32 v5, 7, v1
    v_xor_b32 v4, v4, v5
    v_lshlrev_b32 v3, 10, v3
    v_lshl_add_u32 v{V_LB}, v4, 4, v3
    s_mov_b32 s{S_BST}, 128
    s_lshl_b32 s{S_AOFF}, s{S_R}, 17
    s_add_u32 s{S_AOFF}, s{S_AOFF}, {WS_XN}
    """)
    for u in range(1, 5):
        a(f"v_mov_b32 v{V_LB+u}, v{V_LB}")
    for u in range(5):
        d = R_B5 + 4 * u
        a(f"""
        s_add_u32 s{S_T0}, s{S_U0}, {u}
        s_cmp_lt_u32 s{S_T0}, 16
        s_cselect_b32 s{d}, s{P_WDR}, s{P_WDI}
        s_cselect_b32 s{d+1}, s{P_WDR+1}, s{P_WDI+1}
        s_and_b32 s{S_T0}, s{S_T0}, 15
        s_lshl_b32 s{S_T0}, s{S_T0}, 15
        s_add_u32 s{d}, s{d}, s{S_T0}
        s_addc_u32 s{d+1}, s{d+1}, 0
        s_and_b32 s{d+1}, s{d+1}, 0xffff
        s_mov_b32 s{d+3}, 0x20000
        """)
        if u < 4:
            a(f"s_mov_b32 s{d+2}, 32768")
        else:
            a(f"s_cmp_eq_u32 s{S_CNT}, 5")
            a(f"s_cselect_b32 s{d+2}, 32768, 0")
    a("s_branch L_LD1_GO")
    a.label("L_LD1_MLP")
    a(f"""
    s_mov_b32 s{S_BST}, {64*2752}
    s_lshl_b32 s{S_AOFF}, s{S_R}, 17
    s_add_u32 s{S_AOFF}, s{S_AOFF}, {WS_Y}
    s_movk_i32 s{S_T1}, 3277
    """)
    for u in range(5):
        a(f"""
        v_lshl_add_u32 v3, v2, 6, v1
        v_add_u32 v3, {256*u}, v3              ; q
        v_mul_lo_u32 v4, v3, s{S_T1}
        v_lshrrev_b32 v4, 16, v4               ; k = q/20
        v_mul_u32_u24 v5, 20, v4
        v_sub_u32 v5, v3, v5                   ; c
        v_mul_u32_u24 v4, 2752, v4
        v_lshl_add_u32 v{V_LB+u}, v5, 4, v4
        """)
    a(f"s_lshl_b32 s{S_T0}, s{S_U0}, 6")
    a(f"s_sub_u32 s{S_T1}, {512*2752}, s{S_T0}")
    for u in range(5):
        d = R_B5 + 4 * u
        a(f"""
        s_add_u32 s{d}, s{P_W1}, s{S_T0}
        s_addc_u32 s{d+1}, s{P_W1+1}, 0
        s_and_b32 s{d+1}, s{d+1}, 0xffff
        s_mov_b32 s{d+2}, s{S_T1}
        s_mov_b32 s{d+3}, 0x20000
        """)
    a.label("L_LD1_GO")
    issued = []

    def ldB(g):
        sl = g % 4
        for u in range(5):
            dma(a, S_W1K, 81920 + sl * 20480 + u * 4096, V_LB + u, R_B5 + 4 * u, S_BK)
            issued.append(('B', g))
        a(f"s_add_u32 s{S_BK}, s{S_BK}, s{S_BST}")

    def ldA(g):
        sl = g % 5
        for jj in range(4):
            dma(a, S_W1K, sl * 16384 + jj * 4096, V_LA + jj, R_WS, S_AOFF, SP)
            issued.append(('A', g))
        a(f"s_add_u32 s{S_AOFF}, s{S_AOFF}, 16384")

    def wait_for(g):
        last = max(i for i, x in enumerate(issued) if x[1] == g)
        n = len(issued) - 1 - last
        a(f"s_waitcnt vmcnt({n})")

    for g in range(4):
        ldB(g)
    a("s_barrier")
    a("s_barrier")
    for g in range(5):
        ldA(g)
    wait_for(0)
    a("s_barrier")
    for g in range(7):
        wait_for(g + 1)
        a("s_barrier")
        if g + 5 < 8:
            ldA(g + 5)
        if g + 4 < 8:
            ldB(g + 4)
    R_I = R_B5
    S_N, S_KB, S_POS, S_C, S_N2, S_DB, S_SLOT, S_IO, S_DO = [60 + i for i in range(9)]
    S_I1, S_I2, S_ISZ, S_IST, S_DB0, S_N1s, S_KB1s, S_N2s, S_ROT1, S_ROT2 = 88, 90, 92, 93, 94, 95, 96, 97, 98, 99
    R_D = R_A

    def p2_scalar_setup():
        lm = a.newlabel("Lp2m")
        lg = a.newlabel("Lp2g")
        a(f"s_cmp_eq_u32 s{S_ROLE}, 3")
        a(f"s_cbranch_scc1 {lm}")
        a(f"""
        s_lshl_b32 s{S_T0}, s{S_TT}, 19
        s_add_u32 s{S_I2}, s{P_WSI}, s{S_T0}
        s_addc_u32 s{S_I2+1}, s{P_WSI+1}, 0
        s_and_b32 s{S_I2+1}, s{S_I2+1}, 0xffff
        s_add_u32 s{S_I1}, s{P_WSR}, s{S_T0}
        s_addc_u32 s{S_I1+1}, s{P_WSR+1}, 0
        s_and_b32 s{S_I1+1}, s{S_I1+1}, 0xffff
        s_mov_b32 s{S_ISZ}, {128*4096}
        s_mov_b32 s{S_IST}, 128
        s_lshl_b32 s{S_DB0}, s{S_ET}, 19
        s_add_u32 s{S_DB0}, s{S_DB0}, {WS_AB}
        s_mov_b32 s{S_N1s}, 22
        s_mov_b32 s{S_KB1s}, 0
        s_mov_b32 s{S_N2s}, 0
        s_cmp_eq_u32 s{S_ROLE}, 1
        s_cselect_b32 s{S_N1s}, 10, s{S_N1s}
        s_cselect_b32 s{S_KB1s}, 22, s{S_KB1s}
        s_cselect_b32 s{S_N2s}, 11, s{S_N2s}
        s_cmp_eq_u32 s{S_ROLE}, 2
        s_cselect_b32 s{S_N1s}, 21, s{S_N1s}
        s_cselect_b32 s{S_KB1s}, 11, s{S_KB1s}
        s_cselect_b32 s{S_I1}, s{S_I2}, s{S_I1}
        s_cselect_b32 s{S_I1+1}, s{S_I2+1}, s{S_I1+1}
        s_cselect_b32 s{S_T0}, {2<<20}, 0
        s_add_u32 s{S_DB0}, s{S_DB0}, s{S_T0}
        s_branch {lg}
        """)
        a.label(lm)
        a(f"""
        s_lshl_b32 s{S_T0}, s{S_ET}, 8
        s_add_u32 s{S_I1}, s{P_W2}, s{S_T0}
        s_addc_u32 s{S_I1+1}, s{P_W2+1}, 0
        s_and_b32 s{S_I1+1}, s{S_I1+1}, 0xffff
        s_mov_b32 s{S_I2}, s{S_I1}
        s_mov_b32 s{S_I2+1}, s{S_I1+1}
        s_sub_u32 s{S_ISZ}, {1376*1024}, s{S_T0}
        s_mov_b32 s{S_IST}, 65536
        s_mul_i32 s{S_DB0}, s{S_TT}, {22*16384}
        s_add_u32 s{S_DB0}, s{S_DB0}, {WS_H}
        s_mov_b32 s{S_N1s}, 22
        s_mov_b32 s{S_KB1s}, 0
        s_mov_b32 s{S_N2s}, 0
        """)
        a.label(lg)
        a(f"""
        s_and_b32 s{S_T0}, s{S_TT}, 7
        s_mul_i32 s{S_T0}, s{S_T0}, {OPT['rot_t']}
        s_mul_i32 s{S_T1}, s{S_ET}, {OPT['rot_e']}
        s_add_u32 s{S_T0}, s{S_T0}, s{S_T1}
        s_mov_b32 s{S_ROT1}, s{S_T0}
        s_mov_b32 s{S_ROT2}, s{S_T0}
        """)
        for _ in range(6):
            a(f"""
            s_sub_u32 s{S_T1}, s{S_ROT1}, s{S_N1s}
            s_cmp_ge_u32 s{S_ROT1}, s{S_N1s}
            s_cselect_b32 s{S_ROT1}, s{S_T1}, s{S_ROT1}
            s_sub_u32 s{S_T1}, s{S_ROT2}, 11
            s_cmp_ge_u32 s{S_ROT2}, 11
            s_cselect_b32 s{S_ROT2}, s{S_T1}, s{S_ROT2}
            """)

    p2_scalar_setup()
    a(f"s_cmp_eq_u32 s{S_ROLE}, 3")
    a("s_cbranch_scc1 L_LD2_MLP")
    for jj in range(4):
        a(f"""
        v_lshrrev_b32 v3, 3, v1
        v_lshl_add_u32 v3, v2, 3, v3
        v_add_u32 v3, {32*jj}, v3
        v_bfe_u32 v4, v3, 1, 3
        v_and_b32 v5, 7, v1
        v_xor_b32 v4, v4, v5
        v_lshlrev_b32 v3, 12, v3
        v_lshl_add_u32 v{V_LI+jj}, v4, 4, v3
        """)
    a("s_branch L_LD2_GO")
    a.label("L_LD2_MLP")
    for jj in range(4):
        a(f"""
        v_lshrrev_b32 v3, 4, v1
        v_lshl_add_u32 v3, v2, 2, v3
        v_add_u32 v3, {16*jj}, v3              ; k row
        v_and_b32 v4, 3, v3
        v_lshlrev_b32 v4, 2, v4
        v_and_b32 v5, 15, v1
        v_xor_b32 v4, v4, v5
        v_lshlrev_b32 v3, 10, v3
        v_lshl_add_u32 v{V_LI+jj}, v4, 4, v3
        """)
    a.label("L_LD2_GO")

    def seq_init():
        a(f"""
        s_mov_b32 s{S_N}, s{S_N1s}
        s_mov_b32 s{S_KB}, s{S_KB1s}
        s_mov_b32 s{S_POS}, s{S_ROT1}
        s_mov_b32 s{S_C}, 0
        s_mov_b32 s{S_N2}, s{S_N2s}
        s_mov_b32 s{S_DB}, s{S_DB0}
        s_mov_b32 s{R_I}, s{S_I1}
        s_mov_b32 s{R_I+1}, s{S_I1+1}
        s_mov_b32 s{R_I+2}, s{S_ISZ}
        s_mov_b32 s{R_I+3}, 0x20000
        s_mov_b32 s{R_D}, s{P_WS}
        s_and_b32 s{R_D+1}, s{P_WS+1}, 0xffff
        s_mov_b32 s{R_D+2}, {WS_SIZE}
        s_mov_b32 s{R_D+3}, 0x20000
        s_mov_b32 s{S_SLOT}, s{S_W1K}
        """)

    def seq_issue(indep, dep):
        a(f"""
        s_add_u32 s{S_T0}, s{S_KB}, s{S_POS}
        s_mul_i32 s{S_IO}, s{S_T0}, s{S_IST}
        s_lshl_b32 s{S_DO}, s{S_T0}, 14
        s_add_u32 s{S_DO}, s{S_DO}, s{S_DB}
        """)
        if dep:
            for jj in range(4):
                dma(a, S_SLOT, jj * 4096, V_LA + jj, R_D, S_DO, SP)
        if indep:
            for jj in range(4):
                dma(a, S_SLOT, 81920 + jj * 4096, V_LI + jj, R_I, S_IO)
        sk = a.newlabel("Lseq")
        a(f"""
        s_add_u32 s{S_SLOT}, s{S_SLOT}, 16384
        s_sub_u32 s{S_T0}, s{S_SLOT}, 81920
        s_cmp_ge_u32 s{S_SLOT}, 81920
        s_cselect_b32 s{S_SLOT}, s{S_T0}, s{S_SLOT}
        s_add_u32 s{S_POS}, s{S_POS}, 1
        s_cmp_eq_u32 s{S_POS}, s{S_N}
        s_cselect_b32 s{S_POS}, 0, s{S_POS}
        s_add_u32 s{S_C}, s{S_C}, 1
        s_cmp_lg_u32 s{S_C}, s{S_N}
        s_cbranch_scc1 {sk}
        s_mov_b32 s{S_N}, s{S_N2}
        s_mov_b32 s{S_KB}, 0
        s_mov_b32 s{S_POS}, s{S_ROT2}
        s_mov_b32 s{S_C}, 0
        s_mov_b32 s{R_I}, s{S_I2}
        s_mov_b32 s{R_I+1}, s{S_I2+1}
        s_add_u32 s{S_DB}, s{S_DB}, {2<<20}
        s_cmp_eq_u32 s{S_N2}, 0
        s_cselect_b32 s{R_I+2}, 0, s{R_I+2}
        s_cselect_b32 s{R_D+2}, 0, s{R_D+2}
        s_mov_b32 s{S_N2}, 0
        """)
        a.label(sk)

    seq_init()
    a("s_barrier")
    a(f"s_mov_b32 s{S_X+4}, 5")
    a.label("L_LD2_PRE")
    seq_issue(True, False)
    a(f"s_sub_u32 s{S_X+4}, s{S_X+4}, 1")
    a(f"s_cmp_lg_u32 s{S_X+4}, 0")
    a("s_cbranch_scc1 L_LD2_PRE")

    a.label("L_EPI1")
    p2_scalar_setup()
    V_E = 96
    a(f"s_cmp_eq_u32 s{S_MLP}, 1")
    a("s_cbranch_scc1 L_EPI1_MLP")
    a(f"""
    v_lshlrev_b32 v{V_E}, 4, v0
    v_and_b32 v{V_E+1}, 255, v0
    v_lshlrev_b32 v{V_E+1}, 4, v{V_E+1}
    v_lshrrev_b32 v{V_E+2}, 8, v0
    v_lshl_add_u32 v{V_E+1}, v{V_E+2}, 14, v{V_E+1}
    s_barrier
    """)
    for u in range(5):
        a(f"ds_read_b128 v[{V_E+4+4*u}:{V_E+7+4*u}], v{V_E} offset:{u*8192}")
    for u in range(5):
        if u == 4:
            a(f"s_cmp_lt_u32 s{S_CNT}, 5")
            a("s_cbranch_scc1 L_EPI1_DONE")
        a(f"""
        s_add_u32 s{S_T0}, s{S_U0}, {u}
        s_lshr_b32 s{S_T1}, s{S_T0}, 2
        s_lshl_b32 s{S_T1}, s{S_T1}, 19
        s_and_b32 s{S_T0}, s{S_T0}, 3
        s_lshl_b32 s{S_T0}, s{S_T0}, 12
        s_add_u32 s{S_T0}, s{S_T0}, s{S_T1}
        s_lshl_b32 s{S_T1}, s{S_R}, 15
        s_add_u32 s{S_T0}, s{S_T0}, s{S_T1}
        s_add_u32 s{S_T0}, s{S_T0}, {WS_AB}
        s_waitcnt lgkmcnt({4-u})
        buffer_store_dwordx4 v[{V_E+4+4*u}:{V_E+7+4*u}], v{V_E+1}, s[{R_WS}:{R_WS+3}], s{S_T0} offen {SP}
        """)
    a("s_branch L_EPI1_DONE")
    a.label("L_EPI1_MLP")
    V_BI = V_E + 4
    V_D = V_E + 24
    V_W = V_E + 44
    srd_from(a, R_B, P_B1, 2752)
    a(f"""
    v_and_b32 v{V_E+2}, 3, v0
    v_lshlrev_b32 v{V_E+3}, 4, v{V_E+2}
    s_lshl_b32 s{S_T0}, s{S_U0}, 6
    """)
    for u in range(5):
        a(f"buffer_load_dwordx4 v[{V_BI+4*u}:{V_BI+4*u+3}], v{V_E+3}, s[{R_B}:{R_B+3}], s{S_T0} offen offset:{64*u}")
    a(f"""
    v_lshrrev_b32 v{V_E+1}, 2, v0              ; row
    s_movk_i32 s{S_T0}, 336
    v_mul_lo_u32 v{V_E}, v{V_E+1}, s{S_T0}
    v_add_u32 v{V_E}, v{V_E}, v{V_E+3}
    v_bfe_u32 v{V_E+3}, v0, 3, 3               ; (row>>1)&7
    v_xor_b32 v{V_E+3}, v{V_E+3}, v{V_E+2}
    v_lshlrev_b32 v{V_E+1}, 7, v{V_E+1}
    v_lshl_add_u32 v{V_E+1}, v{V_E+3}, 4, v{V_E+1}   ; v_even
    s_barrier
    """)
    for u in range(5):
        a(f"ds_read_b128 v[{V_D+4*u}:{V_D+4*u+3}], v{V_E} offset:{u*64}")
    K0 = -2.0 * math.log2(math.e) * 0.7978845608028654
    K1 = K0 * 0.044715
    S_K1 = S_X + 5
    a(f"s_mov_b32 s{S_K1}, {f32hex(K1)}")
    a(f"v_mov_b32 v{V_E+2}, {f32hex(K0)}")
    a("s_waitcnt vmcnt(0)")
    for u in range(5):
        x = [V_W + i for i in range(8)]
        e = [V_W + 8 + i for i in range(8)]
        pk = V_W + 16 + 4 * (u % 2)
        if u == 4:
            a(f"s_cmp_eq_u32 s{S_CNT}, 5")
            a("s_cbranch_scc1 L_EPI1_U4")
            a(f"s_cmp_eq_u32 s{S_U0}, 39")
            a("s_cbranch_scc0 L_EPI1_DONE")
            for i in range(4):
                a(f"v_mov_b32 v{pk+i}, 0")
            a("s_branch L_EPI1_U4ST")
            a.label("L_EPI1_U4")
        a(f"s_waitcnt lgkmcnt({4-u})")
        for i in range(4):
            a(f"v_lshlrev_b32 v{x[2*i]}, 16, v{V_D+4*u+i}")
            a(f"v_and_b32 v{x[2*i+1]}, 0xffff0000, v{V_D+4*u+i}")
            a(f"v_lshlrev_b32 v{e[2*i]}, 16, v{V_BI+4*u+i}")
            a(f"v_and_b32 v{e[2*i+1]}, 0xffff0000, v{V_BI+4*u+i}")
        for i in range(8):
            a(f"v_add_f32 v{x[i]}, v{x[i]}, v{e[i]}")
        for i in range(4):
            bf16_round_pair(a, x[2*i], x[2*i+1], e[i])
        for i in range(8):
            a(f"v_mul_f32 v{e[i]}, v{x[i]}, v{x[i]}")
        for i in range(8):
            a(f"v_fma_f32 v{e[i]}, v{e[i]}, s{S_K1}, v{V_E+2}")
        for i in range(8):
            a(f"v_mul_f32 v{e[i]}, v{e[i]}, v{x[i]}")
        for i in range(8):
            a(f"v_exp_f32 v{e[i]}, v{e[i]}")
        for i in range(8):
            a(f"v_add_f32 v{e[i]}, 1.0, v{e[i]}")
        for i in range(8):
            a(f"v_rcp_f32 v{e[i]}, v{e[i]}")
        for i in range(8):
            a(f"v_mul_f32 v{x[i]}, v{x[i]}, v{e[i]}")
        for i in range(4):
            a(f"v_cvt_pk_bf16_f32 v{pk+i}, v{x[2*i]}, v{x[2*i+1]}")
        if u == 4:
            a.label("L_EPI1_U4ST")
        a(f"""
        s_add_u32 s{S_T0}, s{S_U0}, {u}
        s_and_b32 s{S_T1}, s{S_T0}, 1
        s_lshl_b32 s{S_T1}, s{S_T1}, 6
        v_xor_b32 v{V_E+3}, s{S_T1}, v{V_E+1}
        s_lshr_b32 s{S_T0}, s{S_T0}, 1
        s_mul_i32 s{S_T1}, s{S_R}, 22
        s_add_u32 s{S_T0}, s{S_T0}, s{S_T1}
        s_lshl_b32 s{S_T0}, s{S_T0}, 14
        s_add_u32 s{S_T0}, s{S_T0}, {WS_H}
        buffer_store_dwordx4 v[{pk}:{pk+3}], v{V_E+3}, s[{R_WS}:{R_WS+3}], s{S_T0} offen {SP}
        """)
    a.label("L_EPI1_DONE")
    a("s_waitcnt vmcnt(0) lgkmcnt(0)")
    a("s_barrier")
    a(f"v_readfirstlane_b32 s{S_T0}, v0")
    a("s_nop 3")
    a(f"s_cmp_lg_u32 s{S_T0}, 0")
    a("s_cbranch_scc1 L_S2DONE")
    stamp(a, "epi1 done")
    flag_store(a, 2, V_E, V_E + 1)
    a(f"v_lshlrev_b32 v{V_E}, 6, v1")
    a(f"v_add_u32 v{V_E}, {WS_FLAG + 2*16384}, v{V_E}")
    poll(a, V_E, 4, V_E + 1)
    stamp(a, "S2 done")
    a.label("L_S2DONE")
    a("s_barrier")
    a(f"v_readfirstlane_b32 s{S_T0}, v0")
    a("s_nop 3")
    a(f"s_cmp_ge_u32 s{S_T0}, 256")
    a("s_cbranch_scc1 L_LOADER2")

    V_FR2 = 16
    S_G2, S_TM1, S_SW, S_SL2, S_PO = S_X, S_X + 1, S_X + 2, S_X + 3, S_X + 4
    frag_pattern(a, P, V_T, V_T + 1)
    a(f"""
    v_and_b32 v{V_T}, 1, v2
    v_lshlrev_b32 v{V_T}, 13, v{V_T}          ; wm*8192
    v_lshrrev_b32 v{V_T+1}, 1, v2
    v_lshlrev_b32 v{V_T+1}, 13, v{V_T+1}      ; wn*8192
    s_mov_b32 s{S_G2}, 0
    s_mov_b32 s{S_SL2}, 0
    s_and_b32 s{S_T0}, s{S_ROLE}, 1
    s_lshr_b32 s{S_T1}, s{S_ROLE}, 1
    s_xor_b32 s{S_T0}, s{S_T0}, s{S_T1}
    s_sub_u32 s{S_TM1}, 21, s{S_T0}
    s_cmp_eq_u32 s{S_ROLE}, 1
    s_cselect_b32 s{S_SW}, 9, 99
    s_lshl_b32 s{S_T0}, s{S_TT}, 2
    s_add_u32 s{S_T0}, s{S_T0}, s{S_ET}
    s_mul_i32 s{S_T0}, s{S_T0}, 5
    s_add_u32 s{S_T0}, s{S_T0}, s{S_ROLE}
    s_add_u32 s{S_T0}, s{S_T0}, s{S_T1}
    s_lshl_b32 s{S_T0}, s{S_T0}, 2
    s_add_u32 s{S_T0}, s{S_T0}, s{S_WAVE}
    s_lshl_b32 s{S_T0}, s{S_T0}, 14
    s_add_u32 s{S_PO}, s{S_T0}, {WS_P}
    v_lshlrev_b32 v{V_T+4}, 4, v1
    v_add_u32 v{V_T+5}, 4096, v{V_T+4}
    v_add_u32 v{V_T+6}, 8192, v{V_T+4}
    v_add_u32 v{V_T+7}, 12288, v{V_T+4}
    """)
    for i in range(64):
        a(f"v_accvgpr_write_b32 a{i}, 0")

    def store_partial():
        a("s_nop 7")
        a("s_nop 4")
        for q in range(16):
            a(f"buffer_store_dwordx4 a[{4*q}:{4*q+3}], v{V_T+4+q//4}, s[{R_WS}:{R_WS+3}], s{S_PO} offen offset:{1024*(q%4)} {SP}")

    a(f"s_cmp_eq_u32 s{S_ROLE}, 3")
    a("s_cbranch_scc1 L_P2_MLP")

    def p2_loop(mlp):
        tagn = "M" if mlp else "D"
        if not mlp:
            for kk in range(4):
                a(f"v_add_u32 v{V_PA+kk}, v{P[kk]}, v{V_T}")
                a(f"v_add_u32 v{V_PB+kk}, v{P[kk]}, v{V_T+1}")
                a(f"v_add_u32 v{V_PB+kk}, 81920, v{V_PB+kk}")
            na = 4
        else:
            for kk in range(4):
                a(f"v_add_u32 v{V_PB+kk}, v{P[kk]}, v{V_T+1}")
            a(f"""
            v_lshrrev_b32 v{V_T+2}, 5, v1
            v_lshlrev_b32 v{V_T+2}, 3, v{V_T+2}
            v_bfe_u32 v{V_T+3}, v1, 2, 2              ; r
            v_add_u32 v{V_T+2}, v{V_T+2}, v{V_T+3}    ; row
            v_lshlrev_b32 v{V_T+3}, 2, v{V_T+3}       ; r<<2
            v_and_b32 v{V_PA}, 1, v2
            v_lshlrev_b32 v{V_PA}, 3, v{V_PA}         ; 8wm
            v_bfe_u32 v{V_PA+1}, v1, 4, 1
            v_lshl_add_u32 v{V_PA}, v{V_PA+1}, 1, v{V_PA}
            v_bfe_u32 v{V_PA+1}, v1, 1, 1
            v_add_u32 v{V_PA}, v{V_PA}, v{V_PA+1}     ; chunk
            v_xor_b32 v{V_PA}, v{V_PA}, v{V_T+3}
            v_lshlrev_b32 v{V_PA}, 4, v{V_PA}
            v_lshl_add_u32 v{V_PA}, v{V_T+2}, 8, v{V_PA}
            v_and_b32 v{V_PA+1}, 1, v1
            v_lshl_add_u32 v{V_PA}, v{V_PA+1}, 3, v{V_PA}
            v_add_u32 v{V_PA}, 81920, v{V_PA}
            v_xor_b32 v{V_PA+1}, 64, v{V_PA}
            """)
            na = 2

        def addr():
            for kk in range(na):
                a(f"v_add_u32 v{V_RA+kk}, s{S_SL2}, v{V_PA+kk}")
            for kk in range(4):
                a(f"v_add_u32 v{V_RB+kk}, s{S_SL2}, v{V_PB+kk}")

        def reads(buf):
            base = V_FR2 + buf * 64
            for kk in range(4):
                b = base + 16 * kk
                if not mlp:
                    a(f"ds_read_b128 v[{b}:{b+3}], v{V_RA+kk}")
                    a(f"ds_read_b128 v[{b+8}:{b+11}], v{V_RB+kk}")
                    a(f"ds_read_b128 v[{b+4}:{b+7}], v{V_RA+kk} offset:4096")
                    a(f"ds_read_b128 v[{b+12}:{b+15}], v{V_RB+kk} offset:4096")
                else:
                    for mi in range(2):
                        a(f"ds_read_b64_tr_b16 v[{b+4*mi}:{b+4*mi+1}], v{V_RA+mi} offset:{kk*4096}")
                        a(f"ds_read_b64_tr_b16 v[{b+4*mi+2}:{b+4*mi+3}], v{V_RA+mi} offset:{kk*4096+1024}")
                    a(f"ds_read_b128 v[{b+8}:{b+11}], v{V_RB+kk}")
                    a(f"ds_read_b128 v[{b+12}:{b+15}], v{V_RB+kk} offset:4096")

        def mfmas(buf):
            base = V_FR2 + buf * 64
            for kk in range(4):
                b = base + 16 * kk
                for mi in range(2):
                    for ni in range(2):
                        ac = 16 * (mi * 2 + ni)
                        a(f"v_mfma_f32_32x32x16_bf16 a[{ac}:{ac+15}], v[{b+4*mi}:{b+4*mi+3}], v[{b+8+4*ni}:{b+8+4*ni+3}], a[{ac}:{ac+15}]")

        addr()
        a("s_barrier")
        if not mlp:
            stamp(a, "P0")
        reads(0)
        a.label(f"L_P2{tagn}_LOOP")
        for cur in range(2):
            a("s_waitcnt lgkmcnt(0)")
            a(f"s_cmp_eq_u32 s{S_G2}, s{S_TM1}")
            a(f"s_cbranch_scc1 L_P2{tagn}_LAST{cur}")
            a(f"""
            s_add_u32 s{S_SL2}, s{S_SL2}, 16384
            s_cmp_eq_u32 s{S_SL2}, 81920
            s_cselect_b32 s{S_SL2}, 0, s{S_SL2}
            """)
            addr()
            a("s_barrier")
            reads(1 - cur)
            mfmas(cur)
            if not mlp:
                sk = a.newlabel("Lsw")
                a(f"s_cmp_lg_u32 s{S_G2}, s{S_SW}")
                a(f"s_cbranch_scc1 {sk}")
                store_partial()
                a("s_nop 1")
                for i in range(64):
                    a(f"v_accvgpr_write_b32 a{i}, 0")
                a(f"s_add_u32 s{S_PO}, s{S_PO}, 65536")
                a.label(sk)
            a(f"s_add_u32 s{S_G2}, s{S_G2}, 1")
        a(f"s_branch L_P2{tagn}_LOOP")
        a.label(f"L_P2{tagn}_LAST0")
        mfmas(0)
        a("s_branch L_P2_STORE")
        a.label(f"L_P2{tagn}_LAST1")
        mfmas(1)
        a("s_branch L_P2_STORE")

    p2_loop(False)
    a.label("L_P2_MLP")
    p2_loop(True)
    a.label("L_P2_STORE")
    stamp(a, "P2 loop done")
    store_partial()
    a("s_branch L_X")

    a.label("L_LOADER2")
    seq_init()
    a(f"s_mov_b32 s{S_X+4}, 5")
    a.label("L_LD2_DEP")
    seq_issue(False, True)
    a(f"s_sub_u32 s{S_X+4}, s{S_X+4}, 1")
    a(f"s_cmp_lg_u32 s{S_X+4}, 0")
    a("s_cbranch_scc1 L_LD2_DEP")
    a("s_waitcnt vmcnt(16)")
    a("s_barrier")
    for n in (12, 16, 20):
        a(f"s_waitcnt vmcnt({n})")
        a("s_barrier")
        seq_issue(True, True)
    a(f"""
    s_and_b32 s{S_T0}, s{S_ROLE}, 1
    s_lshr_b32 s{S_T1}, s{S_ROLE}, 1
    s_xor_b32 s{S_T0}, s{S_T0}, s{S_T1}
    s_sub_u32 s{S_X+4}, 18, s{S_T0}
    """)
    a.label("L_LD2_LOOP")
    a("s_waitcnt vmcnt(24)")
    a("s_barrier")
    seq_issue(True, True)
    a(f"s_sub_u32 s{S_X+4}, s{S_X+4}, 1")
    a(f"s_cmp_lg_u32 s{S_X+4}, 0")
    a("s_cbranch_scc1 L_LD2_LOOP")

    a.label("L_X")
    V_P = 16
    V_XX, V_BB = 56, 60
    V_O, V_PO, V_TT = 64, 65, 66
    srd_from(a, R_A, P_X, 2048 * 1024)
    srd_from(a, R_B, P_B2, 1024)
    a(f"""
    v_lshrrev_b32 v2, 6, v0
    s_and_b32 s{S_T0}, s{S_ROLE}, 1
    s_lshl_b32 s{S_T0}, s{S_T0}, 6
    s_lshl_b32 s{S_T1}, s{S_ET}, 7
    s_add_u32 s{S_T0}, s{S_T0}, s{S_T1}
    v_lshrrev_b32 v{V_TT}, 2, v2
    v_lshlrev_b32 v{V_TT}, 5, v{V_TT}
    v_and_b32 v{V_TT+1}, 1, v2
    v_lshl_add_u32 v{V_TT}, v{V_TT+1}, 4, v{V_TT}
    v_add_u32 v{V_TT}, s{S_T0}, v{V_TT}            ; e0 + 16h
    v_lshrrev_b32 v{V_TT+1}, 5, v1
    v_lshl_add_u32 v{V_TT+2}, v{V_TT+1}, 2, v{V_TT}  ; eA
    v_lshl_add_u32 v{V_TT+3}, v{V_TT+1}, 3, v{V_TT}  ; e store
    v_lshlrev_b32 v{V_TT+2}, 1, v{V_TT+2}
    v_lshlrev_b32 v{V_TT+3}, 1, v{V_TT+3}
    s_lshr_b32 s{S_T0}, s{S_ROLE}, 1
    s_lshl_b32 s{S_T0}, s{S_T0}, 6
    s_lshl_b32 s{S_T1}, s{S_TT}, 7
    s_add_u32 s{S_T0}, s{S_T0}, s{S_T1}
    v_bfe_u32 v{V_TT}, v2, 1, 1
    v_lshlrev_b32 v{V_TT}, 5, v{V_TT}
    v_and_b32 v{V_TT+1}, 31, v1
    v_add_u32 v{V_TT}, v{V_TT}, v{V_TT+1}
    v_add_u32 v{V_TT}, s{S_T0}, v{V_TT}            ; t
    v_lshl_add_u32 v{V_O}, v{V_TT}, 10, v{V_TT+3}
    v_lshl_add_u32 v{V_TT+1}, v{V_TT}, 10, v{V_TT+2}
    s_waitcnt vmcnt(0)
    buffer_load_dwordx2 v[{V_XX}:{V_XX+1}], v{V_TT+1}, s[{R_A}:{R_A+3}], 0 offen
    buffer_load_dwordx2 v[{V_XX+2}:{V_XX+3}], v{V_TT+1}, s[{R_A}:{R_A+3}], 0 offen offset:16
    buffer_load_dwordx2 v[{V_BB}:{V_BB+1}], v{V_TT+2}, s[{R_B}:{R_B+3}], 0 offen
    buffer_load_dwordx2 v[{V_BB+2}:{V_BB+3}], v{V_TT+2}, s[{R_B}:{R_B+3}], 0 offen offset:16
    v_lshlrev_b32 v{V_PO}, 4, v1
    v_lshl_add_u32 v{V_PO}, v2, 11, v{V_PO}
    s_lshl_b32 s{S_T0}, s{S_TT}, 2
    s_add_u32 s{S_T0}, s{S_T0}, s{S_ET}
    s_mul_i32 s{S_T0}, s{S_T0}, 20
    s_add_u32 s{S_T0}, s{S_T0}, s{S_ROLE}
    s_lshl_b32 s{S_T0}, s{S_T0}, 14
    s_add_u32 s{S_X}, s{S_T0}, {WS_P}
    s_barrier
    v_readfirstlane_b32 s{S_T0}, v0
    s_nop 3
    s_cmp_lg_u32 s{S_T0}, 0
    s_cbranch_scc1 L_S3DONE
    """)
    stamp(a, "partials stored")
    flag_store(a, 3, V_TT + 4, V_TT + 5)
    a(f"""
    s_and_b32 s{S_T0}, s2, 0xfc
    v_and_b32 v{V_TT+4}, 3, v1
    v_or_b32 v{V_TT+4}, s{S_T0}, v{V_TT+4}
    v_lshlrev_b32 v{V_TT+4}, 6, v{V_TT+4}
    v_add_u32 v{V_TT+4}, {WS_FLAG + 3*16384}, v{V_TT+4}
    """)
    poll(a, V_TT + 4, 1, V_TT + 5)
    stamp(a, "S3 done")
    a.label("L_S3DONE")
    a("s_barrier")
    for sl in range(5):
        for hh in range(2):
            d = V_P + 8 * sl + 4 * hh
            a(f"buffer_load_dwordx4 v[{d}:{d+3}], v{V_PO}, s[{R_WS}:{R_WS+3}], s{S_X} offen offset:{1024*hh} {SP}")
        if sl < 4:
            a(f"s_add_u32 s{S_X}, s{S_X}, 65536")
    srd_from(a, R_A, P_OUT, 2048 * 1024)
    a(f"s_mov_b32 s{S_X+1}, 0xbfb8aa3b")
    a("s_waitcnt vmcnt(0)")
    re_, im_, oo_ = V_P, V_P + 16, V_P + 32
    tt = V_TT + 4
    E = [72 + i for i in range(8)]
    for i in range(8):
        a(f"v_add_f32 v{re_+i}, v{re_+i}, v{re_+8+i}")
        a(f"v_add_f32 v{im_+i}, v{im_+i}, v{im_+8+i}")
    for i in range(0, 8, 2):
        bf16_round_pair(a, re_ + i, re_ + i + 1, tt)
        bf16_round_pair(a, im_ + i, im_ + i + 1, tt)
        bf16_round_pair(a, oo_ + i, oo_ + i + 1, tt)
    for i in range(8):
        a(f"v_sub_f32 v{re_+i}, v{re_+i}, v{im_+i}")
        src = V_BB + i // 2
        if i % 2 == 0:
            a(f"v_lshlrev_b32 v{tt}, 16, v{src}")
        else:
            a(f"v_and_b32 v{tt}, 0xffff0000, v{src}")
        a(f"v_add_f32 v{oo_+i}, v{oo_+i}, v{tt}")
    for i in range(0, 8, 2):
        bf16_round_pair(a, re_ + i, re_ + i + 1, tt)
        bf16_round_pair(a, oo_ + i, oo_ + i + 1, tt)
    for i in range(8):
        a(f"v_mul_f32 v{E[i]}, s{S_X+1}, v{oo_+i}")
    for i in range(8):
        a(f"v_exp_f32 v{E[i]}, v{E[i]}")
    for i in range(8):
        a(f"v_add_f32 v{E[i]}, 1.0, v{E[i]}")
    for i in range(8):
        a(f"v_rcp_f32 v{E[i]}, v{E[i]}")
    for i in range(8):
        a(f"v_mul_f32 v{oo_+i}, v{oo_+i}, v{E[i]}")
    for i in range(0, 8, 2):
        bf16_round_pair(a, oo_ + i, oo_ + i + 1, tt)
    for i in range(8):
        a(f"v_mul_f32 v{re_+i}, v{re_+i}, v{oo_+i}")
    for i in range(0, 8, 2):
        bf16_round_pair(a, re_ + i, re_ + i + 1, tt)
    for i in range(8):
        src = V_XX + i // 2
        if i % 2 == 0:
            a(f"v_lshlrev_b32 v{tt}, 16, v{src}")
        else:
            a(f"v_and_b32 v{tt}, 0xffff0000, v{src}")
        a(f"v_add_f32 v{re_+i}, v{re_+i}, v{tt}")
    pk = 80
    for i in range(4):
        a(f"v_cvt_pk_bf16_f32 v{pk+i}, v{re_+2*i}, v{re_+2*i+1}")
    a("s_nop 1")
    a(f"v_permlane32_swap_b32 v{pk}, v{pk+2}")
    a(f"v_permlane32_swap_b32 v{pk+1}, v{pk+3}")
    a("s_nop 1")
    a(f"buffer_store_dwordx4 v[{pk}:{pk+3}], v{V_O}, s[{R_A}:{R_A+3}], 0 offen")
    if OPT['stamp']:
        a(f"v_readfirstlane_b32 s{S_T0}, v0")
        a("s_nop 3")
        a(f"s_cmp_lg_u32 s{S_T0}, 0")
        a("s_cbranch_scc1 L_END")
        a("s_waitcnt vmcnt(0)")
        stamp(a, "end")
        a(f"s_lshl_b32 s{S_T0}, s2, 6")
        a(f"s_add_u32 s{S_T0}, s{S_T0}, {WS_ST}")
        a("v_mov_b32 v3, 0")
        a("s_mov_b64 exec, 1")
        for i in range(NSTAMP[0]):
            a(f"v_mov_b32 v4, s{S_STAMP+i}")
            a(f"buffer_store_dword v4, v3, s[{R_WS}:{R_WS+3}], s{S_T0} offen offset:{4*i}")
    a.label("L_END")
    a("s_endpgm")


def main(out):
    a = Asm()
    hdr = f"""; generated by gen/gen2.py
; @launch grid=(256,1,1) block=(512,1,1) lds=163840
.amdgcn_target "amdgcn-amd-amdhsa--gfx950"
.text
"""
    gen(a)
    desc = f""".section .rodata,"a"
.p2align 6
.amdhsa_kernel {KNAME}
  .amdhsa_next_free_vgpr 256
  .amdhsa_next_free_sgpr 102
  .amdhsa_accum_offset 192
  .amdhsa_group_segment_fixed_size 0
  .amdhsa_kernarg_size 104
  .amdhsa_user_sgpr_count 2
  .amdhsa_user_sgpr_kernarg_segment_ptr 1
  .amdhsa_system_sgpr_workgroup_id_x 1
.end_amdhsa_kernel
"""
    open(out, "w").write(hdr + a.text() + desc)


if __name__ == "__main__":
    main(sys.argv[1] if len(sys.argv) > 1 else "p1.s")
```

```python
import sys, math, os, json, struct

OPT = dict(stamp=0, rot_t=3, rot_e=0, pf=3, prio=0, noload=0, nomfma=0, noread=0, p2_ng=8, p2_nb=12)
OPT.update(json.loads(os.environ.get('GEN_OPT', '{}')))

KNAME = "recurrent_scan__spectral_fnet__mixer_channel_mlp__prompt_kernel"
WS_FLAG = 0
WS_XN = 0x100000
WS_Y = 0x300000
WS_AB = 0x600000
WS_H = 0xA00000
WS_P = 0x1000000
WS_ST = 0x3000000
WS_SIZE = 268435456
SC = "sc0 sc1"
SP = "sc1"
SL = OPT.get("sl", "")


def f32hex(x):
    return "0x%08x" % struct.unpack("<I", struct.pack("<f", x))[0]


class Asm:
    def __init__(self):
        self.lines = []
        self.nl = 0

    def __call__(self, s):
        for l in s.strip().split("\n"):
            self.lines.append("    " + l.strip())

    def label(self, l):
        self.lines.append(l + ":")

    def newlabel(self, p="L"):
        self.nl += 1
        return f"{p}_{self.nl}"

    def raw(self, s):
        self.lines.append(s)

    def text(self):
        return "\n".join(self.lines) + "\n"


def srd_from(a, d, lo, size):
    a(f"s_mov_b32 s{d}, s{lo}")
    a(f"s_and_b32 s{d+1}, s{lo+1}, 0xffff")
    a(f"s_mov_b32 s{d+2}, {size}")
    a(f"s_mov_b32 s{d+3}, 0x20000")


def srd_off(a, d, lo, off, size):
    a(f"s_add_u32 s{d}, s{lo}, {off}")
    a(f"s_addc_u32 s{d+1}, s{lo+1}, 0")
    a(f"s_and_b32 s{d+1}, s{d+1}, 0xffff")
    a(f"s_mov_b32 s{d+2}, {size}")
    a(f"s_mov_b32 s{d+3}, 0x20000")


DPP = "row_mask:0xf bank_mask:0xf"


def wave_reduce2(a, vs, ts):
    def each(fmt):
        for v, t in zip(vs, ts):
            a(fmt.format(v=v, t=t))
    a("s_nop 1")
    each("v_add_f32_dpp v{t}, v{v}, v{v} quad_perm:[1,0,3,2] " + DPP)
    a("s_nop 1")
    each("v_add_f32_dpp v{v}, v{t}, v{t} quad_perm:[2,3,0,1] " + DPP)
    a("s_nop 1")
    each("v_add_f32_dpp v{t}, v{v}, v{v} row_half_mirror " + DPP)
    a("s_nop 1")
    each("v_add_f32_dpp v{v}, v{t}, v{t} row_mirror " + DPP)
    a("s_nop 1")
    each("ds_swizzle_b32 v{t}, v{v} offset:0x401F")
    a("s_waitcnt lgkmcnt(0)")
    each("v_add_f32 v{v}, v{v}, v{t}")
    each("v_mov_b32 v{t}, v{v}")
    a("s_nop 1")
    each("v_permlane32_swap_b32 v{v}, v{t}")
    a("s_nop 1")
    each("v_add_f32 v{v}, v{v}, v{t}")


def layernorm_rows(a, rows):
    def each(fn):
        for r in rows:
            fn(r)
    def S(r, i):
        return r['tmp'][i]
    each(lambda r: a(f"v_add_f32 v{S(r,0)}, v{r['f'][0]}, v{r['f'][1]}"))
    for i in range(2, 8):
        each(lambda r: a(f"v_add_f32 v{S(r,0)}, v{S(r,0)}, v{r['f'][i]}"))
    wave_reduce2(a, [S(r, 0) for r in rows], [S(r, 1) for r in rows])
    each(lambda r: a(f"v_mul_f32 v{S(r,2)}, 0x3b000000, v{S(r,0)}"))
    each(lambda r: a(f"v_sub_f32 v{S(r,4)}, v{r['f'][0]}, v{S(r,2)}"))
    each(lambda r: a(f"v_mul_f32 v{S(r,3)}, v{S(r,4)}, v{S(r,4)}"))
    for i in range(1, 8):
        each(lambda r: a(f"v_sub_f32 v{S(r,4)}, v{r['f'][i]}, v{S(r,2)}"))
        each(lambda r: a(f"v_fmac_f32 v{S(r,3)}, v{S(r,4)}, v{S(r,4)}"))
    wave_reduce2(a, [S(r, 3) for r in rows], [S(r, 1) for r in rows])
    each(lambda r: a(f"v_mul_f32 v{S(r,3)}, 0x3b000000, v{S(r,3)}"))
    each(lambda r: a(f"v_cvt_pk_bf16_f32 v{S(r,1)}, v{S(r,2)}, v{S(r,3)}"))
    each(lambda r: a(f"v_lshlrev_b32 v{S(r,2)}, 16, v{S(r,1)}"))
    each(lambda r: a(f"v_and_b32 v{S(r,3)}, 0xffff0000, v{S(r,1)}"))
    each(lambda r: a(f"v_add_f32 v{S(r,3)}, 0x3727c5ac, v{S(r,3)}"))
    each(lambda r: a(f"v_cvt_pk_bf16_f32 v{S(r,1)}, v{S(r,3)}, v{S(r,3)}"))
    each(lambda r: a(f"v_lshlrev_b32 v{S(r,3)}, 16, v{S(r,1)}"))
    each(lambda r: a(f"v_sqrt_f32 v{S(r,3)}, v{S(r,3)}"))
    a("s_nop 0")
    each(lambda r: a(f"v_cvt_pk_bf16_f32 v{S(r,1)}, v{S(r,3)}, v{S(r,3)}"))
    each(lambda r: a(f"v_lshlrev_b32 v{S(r,3)}, 16, v{S(r,1)}"))
    each(lambda r: a(f"v_rcp_f32 v{S(r,5)}, v{S(r,3)}"))
    a("s_nop 0")
    for i in range(0, 8, 2):
        def body(r):
            f, p, t, mean, rr = r['f'], r['p'], S(r, 1), S(r, 2), S(r, 5)
            a(f"v_sub_f32 v{f[i]}, v{f[i]}, v{mean}")
            a(f"v_sub_f32 v{f[i+1]}, v{f[i+1]}, v{mean}")
            a(f"v_cvt_pk_bf16_f32 v{t}, v{f[i]}, v{f[i+1]}")
            a(f"v_lshlrev_b32 v{f[i]}, 16, v{t}")
            a(f"v_and_b32 v{f[i+1]}, 0xffff0000, v{t}")
            a(f"v_mul_f32 v{f[i]}, v{f[i]}, v{rr}")
            a(f"v_mul_f32 v{f[i+1]}, v{f[i+1]}, v{rr}")
            a(f"v_cvt_pk_bf16_f32 v{p[i//2]}, v{f[i]}, v{f[i+1]}")
            a(f"v_lshlrev_b32 v{f[i]}, 16, v{p[i//2]}")
            a(f"v_and_b32 v{f[i+1]}, 0xffff0000, v{p[i//2]}")
        each(body)


def frag_pattern(a, dst4, t0, t1):
    a(f"v_and_b32 v{t0}, 31, v1")
    a(f"v_lshrrev_b32 v{t1}, 1, v{t0}")
    a(f"v_and_b32 v{t1}, 7, v{t1}")
    a(f"v_lshlrev_b32 v{t0}, 7, v{t0}")
    for kk in range(4):
        d = dst4[kk]
        a(f"v_lshrrev_b32 v{d}, 5, v1")
        a(f"v_add_u32 v{d}, {2*kk}, v{d}")
        a(f"v_xor_b32 v{d}, v{d}, v{t1}")
        a(f"v_lshl_add_u32 v{d}, v{d}, 4, v{t0}")


def bf16_round_pair(a, x0, x1, t):
    a(f"v_cvt_pk_bf16_f32 v{t}, v{x0}, v{x1}")
    a(f"v_lshlrev_b32 v{x0}, 16, v{t}")
    a(f"v_and_b32 v{x1}, 0xffff0000, v{t}")


P_X, P_WSR, P_WSI, P_WDR, P_WDI, P_W1, P_B1, P_W2, P_B2, P_OUT, P_DBG, P_WS = 4, 6, 8, 10, 12, 16, 18, 20, 22, 24, 26, 28
S_WAVE, S_XCD, S_IDX, S_R, S_J, S_ROLE, S_TT, S_ET, S_U0, S_CNT, S_MLP = 30, 31, 32, 33, 34, 35, 36, 37, 38, 39, 40
S_TAG = 41
S_T0, S_T1 = 42, 43
R_WS, R_A, R_B = 44, 48, 52
R_B5 = 56
S_X = 76
S_STAMP = 60
NSTAMP = [0]
STN = {}


def stamp(a, name):
    if not OPT['stamp']:
        return
    if name in STN:
        i = STN[name]
    else:
        i = NSTAMP[0]
        NSTAMP[0] += 1
        STN[name] = i
    assert i < 16
    a(f"s_memrealtime s[{S_T0}:{S_T1}]")
    a("s_waitcnt lgkmcnt(0)")
    a(f"s_mov_b32 s{S_STAMP+i}, s{S_T0}")


def flag_store(a, phase, vt0, vt1):
    a(f"""
    s_lshl_b32 s{S_T0}, s2, 6
    s_add_u32 s{S_T0}, s{S_T0}, {WS_FLAG + phase*16384}
    v_mov_b32 v{vt0}, s{S_T0}
    v_mov_b32 v{vt1}, s{S_TAG}
    s_mov_b64 exec, 1
    buffer_store_dword v{vt1}, v{vt0}, s[{R_WS}:{R_WS+3}], 0 offen {SC}
    s_mov_b64 exec, -1
    """)


def poll(a, voff, n, vt):
    lp = a.newlabel("Lpoll")
    dn = a.newlabel("Lpdone")
    a(f"s_mov_b32 s{S_T1}, 400000")
    a.label(lp)
    for i in range(n):
        if i == 0:
            a(f"buffer_load_dword v{vt}, v{voff}, s[{R_WS}:{R_WS+3}], 0 offen {SC}")
        else:
            a(f"s_mov_b32 s{S_T0}, {4096*i}")
            a(f"buffer_load_dword v{vt+i}, v{voff}, s[{R_WS}:{R_WS+3}], s{S_T0} offen {SC}")
    a("s_waitcnt vmcnt(0)")
    for i in range(n):
        a(f"v_xor_b32 v{vt+i}, s{S_TAG}, v{vt+i}")
    for i in range(1, n):
        a(f"v_or_b32 v{vt}, v{vt}, v{vt+i}")
    a(f"v_cmp_ne_u32 vcc, 0, v{vt}")
    a("s_nop 4")
    a(f"s_cbranch_vccz {dn}")
    a("s_sleep 1")
    a(f"s_sub_u32 s{S_T1}, s{S_T1}, 1")
    a(f"s_cmp_lg_u32 s{S_T1}, 0")
    a(f"s_cbranch_scc1 {lp}")
    a.label(dn)


def dma(a, m0base_sgpr, m0imm, voff, srd, soff, sc=""):
    a(f"s_add_u32 m0, s{m0base_sgpr}, {m0imm}")
    a("s_nop 0")
    a(f"buffer_load_dwordx4 v{voff}, s[{srd}:{srd+3}], s{soff} offen {sc} lds")


def gen(a):
    R_I = R_B5
    S_N, S_KB, S_POS, S_C, S_N2, S_DB, S_SLOT, S_IO, S_DO = [60 + i for i in range(9)]
    S_I1, S_I2, S_ISZ, S_IST, S_DB0, S_N1s, S_KB1s, S_N2s, S_ROT1, S_ROT2 = 88, 90, 92, 93, 94, 95, 96, 97, 98, 99
    R_D = R_A

    def p2_scalar_setup():
        lm = a.newlabel("Lp2m")
        lg = a.newlabel("Lp2g")
        a(f"s_cmp_eq_u32 s{S_ROLE}, 3")
        a(f"s_cbranch_scc1 {lm}")
        a(f"""
        s_lshl_b32 s{S_T0}, s{S_TT}, 19
        s_add_u32 s{S_I2}, s{P_WSI}, s{S_T0}
        s_addc_u32 s{S_I2+1}, s{P_WSI+1}, 0
        s_and_b32 s{S_I2+1}, s{S_I2+1}, 0xffff
        s_add_u32 s{S_I1}, s{P_WSR}, s{S_T0}
        s_addc_u32 s{S_I1+1}, s{P_WSR+1}, 0
        s_and_b32 s{S_I1+1}, s{S_I1+1}, 0xffff
        s_mov_b32 s{S_ISZ}, {128*4096}
        s_mov_b32 s{S_IST}, 128
        s_lshl_b32 s{S_DB0}, s{S_ET}, 19
        s_add_u32 s{S_DB0}, s{S_DB0}, {WS_AB}
        s_mov_b32 s{S_N1s}, 22
        s_mov_b32 s{S_KB1s}, 0
        s_mov_b32 s{S_N2s}, 0
        s_cmp_eq_u32 s{S_ROLE}, 1
        s_cselect_b32 s{S_N1s}, 10, s{S_N1s}
        s_cselect_b32 s{S_KB1s}, 22, s{S_KB1s}
        s_cselect_b32 s{S_N2s}, 11, s{S_N2s}
        s_cmp_eq_u32 s{S_ROLE}, 2
        s_cselect_b32 s{S_N1s}, 21, s{S_N1s}
        s_cselect_b32 s{S_KB1s}, 11, s{S_KB1s}
        s_cselect_b32 s{S_I1}, s{S_I2}, s{S_I1}
        s_cselect_b32 s{S_I1+1}, s{S_I2+1}, s{S_I1+1}
        s_cselect_b32 s{S_T0}, {2<<20}, 0
        s_add_u32 s{S_DB0}, s{S_DB0}, s{S_T0}
        s_branch {lg}
        """)
        a.label(lm)
        a(f"""
        s_lshl_b32 s{S_T0}, s{S_ET}, 8
        s_add_u32 s{S_I1}, s{P_W2}, s{S_T0}
        s_addc_u32 s{S_I1+1}, s{P_W2+1}, 0
        s_and_b32 s{S_I1+1}, s{S_I1+1}, 0xffff
        s_mov_b32 s{S_I2}, s{S_I1}
        s_mov_b32 s{S_I2+1}, s{S_I1+1}
        s_sub_u32 s{S_ISZ}, {1376*1024}, s{S_T0}
        s_mov_b32 s{S_IST}, 65536
        s_mul_i32 s{S_DB0}, s{S_TT}, {22*16384}
        s_add_u32 s{S_DB0}, s{S_DB0}, {WS_H}
        s_mov_b32 s{S_N1s}, 22
        s_mov_b32 s{S_KB1s}, 0
        s_mov_b32 s{S_N2s}, 0
        """)
        a.label(lg)
        a(f"""
        s_and_b32 s{S_T0}, s{S_TT}, 7
        s_mul_i32 s{S_T0}, s{S_T0}, {OPT['rot_t']}
        s_mul_i32 s{S_T1}, s{S_ET}, {OPT['rot_e']}
        s_add_u32 s{S_T0}, s{S_T0}, s{S_T1}
        s_mov_b32 s{S_ROT1}, s{S_T0}
        s_mov_b32 s{S_ROT2}, s{S_T0}
        """)
        for _ in range(6):
            a(f"""
            s_sub_u32 s{S_T1}, s{S_ROT1}, s{S_N1s}
            s_cmp_ge_u32 s{S_ROT1}, s{S_N1s}
            s_cselect_b32 s{S_ROT1}, s{S_T1}, s{S_ROT1}
            s_sub_u32 s{S_T1}, s{S_ROT2}, 11
            s_cmp_ge_u32 s{S_ROT2}, 11
            s_cselect_b32 s{S_ROT2}, s{S_T1}, s{S_ROT2}
            """)

    S_PFO, S_PFST, S_PFN, S_PFSW = S_X + 6, S_X + 7, S_X + 8, S_X + 9

    def pf_setup():
        p2_scalar_setup()
        lm = a.newlabel("Lpfm")
        le = a.newlabel("Lpfe")
        a(f"""
        s_mov_b32 s{R_A}, s{S_I1}
        s_mov_b32 s{R_A+1}, s{S_I1+1}
        s_mov_b32 s{R_A+2}, s{S_ISZ}
        s_mov_b32 s{R_A+3}, 0x20000
        s_cmp_eq_u32 s{S_ROLE}, 3
        s_cbranch_scc1 {lm}
        v_lshrrev_b32 v3, 3, v1
        v_lshl_add_u32 v3, v2, 3, v3
        s_lshl_b32 s{S_T0}, s{S_ET}, 5
        v_add_u32 v3, s{S_T0}, v3
        v_lshlrev_b32 v3, 12, v3
        v_and_b32 v4, 7, v1
        v_lshl_add_u32 v3, v4, 6, v3
        s_lshl_b32 s{S_PFO}, s{S_KB1s}, 7
        s_mov_b32 s{S_PFST}, 512
        s_mov_b32 s{S_PFN}, 6
        s_cmp_eq_u32 s{S_N2s}, 0
        s_cselect_b32 s{S_PFSW}, 99, 3
        s_branch {le}
        """)
        a.label(lm)
        a(f"""
        v_lshrrev_b32 v3, 2, v1
        v_mul_u32_u24 v4, 43, v2
        v_add_u32 v3, v3, v4
        s_and_b32 s{S_T0}, s{S_TT}, 7
        s_mul_i32 s{S_T0}, s{S_T0}, 172
        v_add_u32 v3, s{S_T0}, v3
        v_lshlrev_b32 v3, 10, v3
        v_and_b32 v4, 3, v1
        v_lshl_add_u32 v3, v4, 6, v3
        s_mov_b32 s{S_PFO}, 0
        s_mov_b32 s{S_PFST}, 16384
        s_mov_b32 s{S_PFN}, 3
        s_mov_b32 s{S_PFSW}, 99
        """)
        a.label(le)

    def pf_step(sidx):
        sk = a.newlabel("Lpfs")
        a(f"""
        s_cmp_ge_u32 s{sidx}, s{S_PFN}
        s_cbranch_scc1 {sk}
        s_cmp_eq_u32 s{sidx}, s{S_PFSW}
        s_cselect_b32 s{R_A}, s{S_I2}, s{R_A}
        s_cselect_b32 s{R_A+1}, s{S_I2+1}, s{R_A+1}
        s_cselect_b32 s{S_PFO}, 0, s{S_PFO}
        buffer_load_dword v4, v3, s[{R_A}:{R_A+3}], s{S_PFO} offen
        s_add_u32 s{S_PFO}, s{S_PFO}, s{S_PFST}
        """)
        a.label(sk)

    def l2_prefetch():
        pf_setup()
        for i in range(6):
            a(f"s_mov_b32 s{S_T1}, {i}")
            pf_step(S_T1)

    a.raw(f".globl {KNAME}")
    a.raw(".p2align 8")
    a.raw(f".type {KNAME},@function")
    a.label(KNAME)
    a(f"""
    s_cmp_ge_u32 s2, 256
    s_cbranch_scc1 L_END
    s_load_dwordx16 s[4:19], s[0:1], 0
    s_load_dwordx8 s[20:27], s[0:1], 64
    s_load_dwordx2 s[28:29], s[0:1], 96
    v_and_b32 v1, 63, v0
    v_lshrrev_b32 v2, 6, v0
    s_nop 0
    v_readfirstlane_b32 s{S_WAVE}, v2
    s_and_b32 s{S_XCD}, s2, 7
    s_lshr_b32 s{S_IDX}, s2, 3
    s_lshr_b32 s{S_R}, s{S_IDX}, 4
    s_lshl_b32 s{S_T0}, s{S_XCD}, 1
    s_add_u32 s{S_R}, s{S_R}, s{S_T0}
    s_and_b32 s{S_J}, s{S_IDX}, 15
    s_cmp_ge_u32 s{S_J}, 7
    s_cselect_b32 s{S_MLP}, 1, 0
    s_cselect_b32 s{S_T0}, 7, 0
    s_cselect_b32 s{S_T1}, 7, 4
    s_sub_u32 s{S_T0}, s{S_J}, s{S_T0}          ; g
    s_mul_i32 s{S_U0}, s{S_T0}, 5
    s_cmp_lt_u32 s{S_T0}, s{S_T1}
    s_cselect_b32 s{S_CNT}, 5, 4
    s_sub_i32 s{S_T0}, s{S_T0}, s{S_T1}
    s_max_i32 s{S_T0}, s{S_T0}, 0
    s_sub_u32 s{S_U0}, s{S_U0}, s{S_T0}
    s_and_b32 s{S_ROLE}, s{S_XCD}, 3
    s_lshr_b32 s{S_TT}, s{S_XCD}, 2
    s_lshl_b32 s{S_TT}, s{S_TT}, 3
    s_and_b32 s{S_T0}, s{S_IDX}, 7
    s_add_u32 s{S_TT}, s{S_TT}, s{S_T0}
    s_lshr_b32 s{S_ET}, s{S_IDX}, 3
    s_mov_b32 s{S_TAG}, 0
    s_waitcnt lgkmcnt(0)
    """)
    srd_from(a, R_WS, P_WS, WS_SIZE)
    V_BI = 170
    srd_from(a, R_B, P_B1, 2752)
    a(f"""
    v_and_b32 v3, 3, v0
    v_lshlrev_b32 v3, 4, v3
    s_lshl_b32 s{S_T0}, s{S_U0}, 6
    """)
    for u in range(5):
        a(f"buffer_load_dwordx4 v[{V_BI+4*u}:{V_BI+4*u+3}], v3, s[{R_B}:{R_B+3}], s{S_T0} offen offset:{64*u}")
    a(f"s_cmp_ge_u32 s{S_WAVE}, 4")
    a("s_cbranch_scc1 L_LOADER1")

    stamp(a, "start")
    srd_from(a, R_A, P_X, 2048 * 1024)
    srd_from(a, R_B, P_DBG, 256)
    a(f"""
    s_lshl_b32 s{S_T0}, s{S_J}, 3
    s_lshl_b32 s{S_T1}, s{S_WAVE}, 1
    s_add_u32 s{S_X}, s{S_T0}, s{S_T1}
    s_lshl_b32 s{S_T0}, s{S_R}, 7
    s_add_u32 s{S_T0}, s{S_T0}, s{S_X}
    s_lshl_b32 s{S_T0}, s{S_T0}, 10
    v_lshlrev_b32 v3, 4, v1
    buffer_load_dwordx4 v[16:19], v3, s[{R_A}:{R_A+3}], s{S_T0} offen
    buffer_load_dwordx4 v[20:23], v3, s[{R_A}:{R_A+3}], s{S_T0} offen offset:1024
    """)
    a(f"""
    s_or_b32 s{S_T0}, s2, s{S_WAVE}
    s_cmp_lg_u32 s{S_T0}, 0
    s_cbranch_scc1 L_NOTAG
    s_memrealtime s[{S_T0}:{S_T1}]
    s_waitcnt lgkmcnt(0)
    s_lshl_b32 s{S_T0}, s{S_T0}, 2
    s_or_b32 s{S_T0}, s{S_T0}, 3
    v_mov_b32 v4, s{S_T0}
    v_mov_b32 v5, 0
    s_mov_b64 exec, 1
    buffer_store_dword v4, v5, s[{R_B}:{R_B+3}], 0 offen {SC}
    s_mov_b64 exec, -1
    """)
    a.label("L_NOTAG")
    a(f"""
    s_lshr_b32 s{S_T0}, s{S_X}, 1
    s_and_b32 s{S_T0}, s{S_T0}, 7
    v_and_b32 v4, 7, v1
    v_xor_b32 v4, s{S_T0}, v4
    v_lshlrev_b32 v4, 4, v4
    v_lshrrev_b32 v5, 3, v1
    v_lshl_add_u32 v4, v5, 14, v4
    s_lshl_b32 s{S_T0}, s{S_R}, 17
    s_lshl_b32 s{S_T1}, s{S_X}, 7
    s_add_u32 s{S_T0}, s{S_T0}, s{S_T1}
    s_add_u32 s{S_X+1}, s{S_T0}, {WS_XN}
    s_add_u32 s{S_X+2}, s{S_T0}, {WS_Y}
    v_mov_b32 v5, 0
    s_waitcnt vmcnt(0)
    buffer_load_dword v6, v5, s[{R_B}:{R_B+3}], 0 offen {SC}
    """)
    rows = []
    for ri in range(2):
        f = list(range(24 + 8 * ri, 32 + 8 * ri))
        src = 16 + 4 * ri
        for i in range(4):
            a(f"v_lshlrev_b32 v{f[2*i]}, 16, v{src+i}")
            a(f"v_and_b32 v{f[2*i+1]}, 0xffff0000, v{src+i}")
        rows.append(dict(f=f, p=[48 + 4 * ri + i for i in range(4)], tmp=list(range(64 + 8 * ri, 70 + 8 * ri))))
    layernorm_rows(a, rows)
    a(f"buffer_store_dwordx4 v[48:51], v4, s[{R_WS}:{R_WS+3}], s{S_X+1} offen {SP}")
    a(f"buffer_store_dwordx4 v[52:55], v4, s[{R_WS}:{R_WS+3}], s{S_X+1} offen offset:128 {SP}")
    for ri in range(2):
        rows[ri]['p'] = [56 + 4 * ri + i for i in range(4)]
    layernorm_rows(a, rows)
    a(f"buffer_store_dwordx4 v[56:59], v4, s[{R_WS}:{R_WS+3}], s{S_X+2} offen {SP}")
    a(f"buffer_store_dwordx4 v[60:63], v4, s[{R_WS}:{R_WS+3}], s{S_X+2} offen offset:128 {SP}")
    V_ACC, V_FR = 16, 96
    V_PA, V_RA, V_PB, V_RB = 144, 148, 152, 156
    V_T = 160
    P = [V_PB + i for i in range(4)]
    frag_pattern(a, P, V_T, V_T + 1)
    a(f"v_lshlrev_b32 v{V_T}, 12, v2")
    for kk in range(4):
        a(f"v_add_u32 v{V_PA+kk}, v{P[kk]}, v{V_T}")
        a(f"v_mov_b32 v{V_RA+kk}, v{V_PA+kk}")
        a(f"v_add_u32 v{V_PB+kk}, 81920, v{V_PB+kk}")
    a(f"""
    v_lshrrev_b32 v{V_T}, 5, v1             ; g>>1
    v_lshlrev_b32 v{V_T}, 3, v{V_T}
    v_bfe_u32 v{V_T+1}, v1, 2, 2            ; r
    v_add_u32 v{V_T}, v{V_T}, v{V_T+1}
    s_movk_i32 s{S_T0}, 320
    v_mul_lo_u32 v{V_T}, v{V_T}, s{S_T0}
    v_bfe_u32 v{V_T+1}, v1, 4, 1            ; g&1
    v_lshl_add_u32 v{V_T}, v{V_T+1}, 5, v{V_T}
    v_and_b32 v{V_T+1}, 3, v1               ; c
    v_lshl_add_u32 v{V_T}, v{V_T+1}, 3, v{V_T}
    v_add_u32 v{V_T}, 81920, v{V_T}
    s_cmp_eq_u32 s{S_MLP}, 1
    s_cselect_b64 vcc, -1, 0
    s_nop 1
    v_cndmask_b32 v{V_PB}, v{V_PB}, v{V_T}, vcc
    """)
    for kk in range(4):
        a(f"v_mov_b32 v{V_RB+kk}, v{V_PB+kk}")
    a("s_waitcnt vmcnt(0)")
    a(f"v_readfirstlane_b32 s{S_TAG}, v6")
    for i in range(80):
        a(f"v_mov_b32 v{V_ACC+i}, 0")
    stamp(a, "LN done")
    a("s_barrier")
    a(f"s_cmp_lg_u32 s{S_WAVE}, 0")
    a("s_cbranch_scc1 L_S1DONE")
    a(f"s_mov_b32 s{S_T1}, 400000")
    a.label("L_TAGPOLL")
    a(f"""
    s_cmp_lg_u32 s{S_TAG}, 0
    s_cbranch_scc1 L_TAGOK
    buffer_load_dword v6, v5, s[{R_B}:{R_B+3}], 0 offen {SC}
    s_waitcnt vmcnt(0)
    v_readfirstlane_b32 s{S_TAG}, v6
    s_sub_u32 s{S_T1}, s{S_T1}, 1
    s_cmp_lg_u32 s{S_T1}, 0
    s_cbranch_scc1 L_TAGPOLL
    """)
    a.label("L_TAGOK")
    flag_store(a, 1, V_T, V_T + 1)
    a(f"""
    s_and_b32 s{S_T0}, s2, 0x87
    v_and_b32 v{V_T}, 15, v1
    v_lshlrev_b32 v{V_T}, 3, v{V_T}
    v_or_b32 v{V_T}, s{S_T0}, v{V_T}
    v_lshlrev_b32 v{V_T}, 6, v{V_T}
    v_add_u32 v{V_T}, {WS_FLAG + 16384}, v{V_T}
    """)
    poll(a, V_T, 1, V_T + 1)
    a.label("L_S1DONE")
    stamp(a, "S1 done")
    a("s_barrier")
    if OPT['pf'] == 1:
        l2_prefetch()
    if OPT['pf'] == 3:
        pf_setup()
    S_G, S_SA, S_SB = S_X, S_X + 1, S_X + 2
    a(f"s_mov_b32 s{S_G}, 0")
    a(f"s_mov_b32 s{S_SA}, 0")
    a(f"s_mov_b32 s{S_SB}, 0")
    a(f"s_cmp_eq_u32 s{S_MLP}, 1")
    a("s_cbranch_scc1 L_P1_MLP")

    def p1_loop(mlp):
        tagn = "M" if mlp else "D"

        def read_list(kk, buf):
            base = V_FR + buf * 24
            L = [(('A', buf), f"ds_read_b128 v[{base}:{base+3}], v{V_RA+kk}")]
            for u in range(5):
                b = base + 4 + 4 * u
                if mlp:
                    L.append((('B', buf, u), f"ds_read_b64_tr_b16 v[{b}:{b+1}], v{V_RB} offset:{u*64 + kk*5120}"))
                    L.append((('B', buf, u), f"ds_read_b64_tr_b16 v[{b+2}:{b+3}], v{V_RB} offset:{u*64 + kk*5120 + 1280}"))
                else:
                    L.append((('B', buf, u), f"ds_read_b128 v[{b}:{b+3}], v{V_RB+kk} offset:{u*4096}"))
            return L

        fifo = []

        def issue(item):
            a(item[1])
            fifo.append(item[0])

        def need(tags):
            idx = [i for i, t in enumerate(fifo) if t in tags]
            if not idx:
                return
            n = len(fifo) - 1 - max(idx)
            a(f"s_waitcnt lgkmcnt({min(n, 15)})")
            del fifo[:max(idx) + 1]

        def mfma(buf, u):
            need([('A', buf), ('B', buf, u)])
            base = V_FR + buf * 24
            acc = f"v[{V_ACC+16*u}:{V_ACC+16*u+15}]"
            act = f"v[{base}:{base+3}]"
            wgt = f"v[{base+4+4*u}:{base+7+4*u}]"
            if mlp:
                a(f"v_mfma_f32_32x32x16_bf16 {acc}, {wgt}, {act}, {acc}")
            else:
                a(f"v_mfma_f32_32x32x16_bf16 {acc}, {act}, {wgt}, {acc}")

        def split(L, ngap):
            per = (len(L) + ngap - 1) // ngap
            return [L[i * per:(i + 1) * per] for i in range(ngap)]

        a("s_barrier")
        stamp(a, "L0")
        for it in read_list(0, 0):
            issue(it)
        a.label(f"L_P1{tagn}_LOOP")
        for kk in range(3):
            parts = split(read_list(kk + 1, (kk + 1) % 2), 4) + [[]]
            for u in range(5):
                mfma(kk % 2, u)
                for it in parts[u]:
                    issue(it)
        mfma(1, 0)
        a("s_waitcnt lgkmcnt(0)")
        del fifo[:]
        a("s_barrier")
        a(f"s_cmp_eq_u32 s{S_G}, 7")
        a(f"s_cbranch_scc1 L_P1{tagn}_LAST")
        a(f"""
        s_add_u32 s{S_SA}, s{S_SA}, 16384
        s_cmp_eq_u32 s{S_SA}, 81920
        s_cselect_b32 s{S_SA}, 0, s{S_SA}
        s_add_u32 s{S_SB}, s{S_SB}, 20480
        s_cmp_eq_u32 s{S_SB}, 81920
        s_cselect_b32 s{S_SB}, 0, s{S_SB}
        """)
        a(f"v_add_u32 v{V_RA}, s{S_SA}, v{V_PA}")
        a(f"v_add_u32 v{V_RB}, s{S_SB}, v{V_PB}")
        parts = split(read_list(0, 0), 4)
        for u in range(1, 5):
            mfma(1, u)
            for it in parts[u - 1]:
                issue(it)
            if u == 1:
                for kk in range(1, 4):
                    a(f"v_add_u32 v{V_RA+kk}, s{S_SA}, v{V_PA+kk}")
                for kk in range(1, 1 if mlp else 4):
                    a(f"v_add_u32 v{V_RB+kk}, s{S_SB}, v{V_PB+kk}")
        if OPT['pf'] == 3:
            pf_step(S_G)
        a(f"s_add_u32 s{S_G}, s{S_G}, 1")
        a(f"s_branch L_P1{tagn}_LOOP")
        a.label(f"L_P1{tagn}_LAST")
        del fifo[:]
        for u in range(1, 5):
            mfma(1, u)
        stamp(a, "p1 loop done")
        if not mlp:
            a(f"""
            v_and_b32 v{V_T}, 31, v1
            v_bfe_u32 v{V_T+1}, v1, 1, 3
            v_and_b32 v{V_T+2}, 1, v2
            v_lshlrev_b32 v{V_T+2}, 2, v{V_T+2}
            v_xor_b32 v{V_T+1}, v{V_T+1}, v{V_T+2}
            v_lshlrev_b32 v{V_T}, 7, v{V_T}
            v_lshrrev_b32 v{V_T+2}, 1, v2
            v_lshl_add_u32 v{V_T}, v{V_T+2}, 12, v{V_T}
            v_lshrrev_b32 v{V_T+2}, 5, v1
            v_lshl_add_u32 v{V_T}, v{V_T+2}, 3, v{V_T}
            """)
            for q in range(4):
                a(f"v_xor_b32 v{V_T+4+q}, {q}, v{V_T+1}")
                a(f"v_lshl_add_u32 v{V_T+4+q}, v{V_T+4+q}, 4, v{V_T}")
        else:
            a(f"""
            v_and_b32 v{V_T}, 31, v1
            v_lshl_add_u32 v{V_T}, v2, 5, v{V_T}
            s_movk_i32 s{S_T0}, 336
            v_mul_lo_u32 v{V_T}, v{V_T}, s{S_T0}
            v_lshrrev_b32 v{V_T+2}, 5, v1
            v_lshl_add_u32 v{V_T+4}, v{V_T+2}, 3, v{V_T}
            """)
        a("s_nop 7")
        for u in range(5):
            for q in range(4):
                r = V_ACC + 16 * u + 4 * q
                p = V_FR + 2 * ((u * 4 + q) % 8)
                a(f"v_cvt_pk_bf16_f32 v{p}, v{r}, v{r+1}")
                a(f"v_cvt_pk_bf16_f32 v{p+1}, v{r+2}, v{r+3}")
                if mlp:
                    a(f"ds_write_b64 v{V_T+4}, v[{p}:{p+1}] offset:{u*64 + q*16}")
                else:
                    a(f"ds_write_b64 v{V_T+4+q}, v[{p}:{p+1}] offset:{u*8192}")
        a("s_waitcnt lgkmcnt(0)")
        stamp(a, "staged")
        a("s_branch L_EPI1")

    p1_loop(False)
    a.label("L_P1_MLP")
    p1_loop(True)

    a.label("L_LOADER1")
    V_LA, V_LB, V_LI = 16, 20, 26
    S_W1K, S_AOFF, S_BK, S_BST = S_X, S_X + 1, S_X + 2, S_X + 3
    a(f"""
    s_sub_u32 s{S_WAVE}, s{S_WAVE}, 4
    s_lshl_b32 s{S_W1K}, s{S_WAVE}, 10
    v_and_b32 v2, 3, v2
    v_lshlrev_b32 v{V_LA}, 4, v1
    v_lshl_add_u32 v{V_LA}, v2, 10, v{V_LA}
    v_add_u32 v{V_LA+1}, 4096, v{V_LA}
    v_add_u32 v{V_LA+2}, 8192, v{V_LA}
    v_add_u32 v{V_LA+3}, 12288, v{V_LA}
    s_mov_b32 s{S_BK}, 0
    s_cmp_eq_u32 s{S_MLP}, 1
    s_cbranch_scc1 L_LD1_MLP
    """)
    a(f"""
    v_lshrrev_b32 v3, 3, v1
    v_lshl_add_u32 v3, v2, 3, v3
    v_bfe_u32 v4, v3, 1, 3
    v_and_b32 v5, 7, v1
    v_xor_b32 v4, v4, v5
    v_lshlrev_b32 v3, 10, v3
    v_lshl_add_u32 v{V_LB}, v4, 4, v3
    s_mov_b32 s{S_BST}, 128
    s_lshl_b32 s{S_AOFF}, s{S_R}, 17
    s_add_u32 s{S_AOFF}, s{S_AOFF}, {WS_XN}
    """)
    for u in range(1, 5):
        a(f"v_mov_b32 v{V_LB+u}, v{V_LB}")
    for u in range(5):
        d = R_B5 + 4 * u
        a(f"""
        s_add_u32 s{S_T0}, s{S_U0}, {u}
        s_cmp_lt_u32 s{S_T0}, 16
        s_cselect_b32 s{d}, s{P_WDR}, s{P_WDI}
        s_cselect_b32 s{d+1}, s{P_WDR+1}, s{P_WDI+1}
        s_and_b32 s{S_T0}, s{S_T0}, 15
        s_lshl_b32 s{S_T0}, s{S_T0}, 15
        s_add_u32 s{d}, s{d}, s{S_T0}
        s_addc_u32 s{d+1}, s{d+1}, 0
        s_and_b32 s{d+1}, s{d+1}, 0xffff
        s_mov_b32 s{d+3}, 0x20000
        """)
        if u < 4:
            a(f"s_mov_b32 s{d+2}, 32768")
        else:
            a(f"s_cmp_eq_u32 s{S_CNT}, 5")
            a(f"s_cselect_b32 s{d+2}, 32768, 0")
    a("s_branch L_LD1_GO")
    a.label("L_LD1_MLP")
    a(f"""
    s_mov_b32 s{S_BST}, {64*2752}
    s_lshl_b32 s{S_AOFF}, s{S_R}, 17
    s_add_u32 s{S_AOFF}, s{S_AOFF}, {WS_Y}
    s_movk_i32 s{S_T1}, 3277
    """)
    for u in range(5):
        a(f"""
        v_lshl_add_u32 v3, v2, 6, v1
        v_add_u32 v3, {256*u}, v3              ; q
        v_mul_lo_u32 v4, v3, s{S_T1}
        v_lshrrev_b32 v4, 16, v4               ; k = q/20
        v_mul_u32_u24 v5, 20, v4
        v_sub_u32 v5, v3, v5                   ; c
        v_mul_u32_u24 v4, 2752, v4
        v_lshl_add_u32 v{V_LB+u}, v5, 4, v4
        """)
    a(f"s_lshl_b32 s{S_T0}, s{S_U0}, 6")
    a(f"s_sub_u32 s{S_T1}, {512*2752}, s{S_T0}")
    for u in range(5):
        d = R_B5 + 4 * u
        a(f"""
        s_add_u32 s{d}, s{P_W1}, s{S_T0}
        s_addc_u32 s{d+1}, s{P_W1+1}, 0
        s_and_b32 s{d+1}, s{d+1}, 0xffff
        s_mov_b32 s{d+2}, s{S_T1}
        s_mov_b32 s{d+3}, 0x20000
        """)
    a.label("L_LD1_GO")
    issued = []

    def ldB(g):
        sl = g % 4
        for u in range(5):
            dma(a, S_W1K, 81920 + sl * 20480 + u * 4096, V_LB + u, R_B5 + 4 * u, S_BK)
            issued.append(('B', g))
        a(f"s_add_u32 s{S_BK}, s{S_BK}, s{S_BST}")

    def ldA(g):
        sl = g % 5
        for jj in range(4):
            dma(a, S_W1K, sl * 16384 + jj * 4096, V_LA + jj, R_WS, S_AOFF, SL)
            issued.append(('A', g))
        a(f"s_add_u32 s{S_AOFF}, s{S_AOFF}, 16384")

    def wait_for(g):
        last = max(i for i, x in enumerate(issued) if x[1] == g)
        n = len(issued) - 1 - last
        a(f"s_waitcnt vmcnt({n})")

    for g in range(4):
        ldB(g)
    if OPT['pf'] == 2:
        l2_prefetch()
    a("s_barrier")
    a("s_barrier")
    for g in range(5):
        ldA(g)
    wait_for(0)
    a("s_barrier")
    for g in range(7):
        wait_for(g + 1)
        a("s_barrier")
        if g + 5 < 8:
            ldA(g + 5)
        if g + 4 < 8:
            ldB(g + 4)
    p2_scalar_setup()
    a(f"s_cmp_eq_u32 s{S_ROLE}, 3")
    a("s_cbranch_scc1 L_LD2_MLP")
    for jj in range(4):
        a(f"""
        v_lshrrev_b32 v3, 3, v1
        v_lshl_add_u32 v3, v2, 3, v3
        v_add_u32 v3, {32*jj}, v3
        v_bfe_u32 v4, v3, 1, 3
        v_and_b32 v5, 7, v1
        v_xor_b32 v4, v4, v5
        v_lshlrev_b32 v3, 12, v3
        v_lshl_add_u32 v{V_LI+jj}, v4, 4, v3
        """)
    a("s_branch L_LD2_GO")
    a.label("L_LD2_MLP")
    for jj in range(4):
        a(f"""
        v_lshrrev_b32 v3, 4, v1
        v_lshl_add_u32 v3, v2, 2, v3
        v_add_u32 v3, {16*jj}, v3              ; k row
        v_and_b32 v4, 3, v3
        v_lshlrev_b32 v4, 2, v4
        v_and_b32 v5, 15, v1
        v_xor_b32 v4, v4, v5
        v_lshlrev_b32 v3, 10, v3
        v_lshl_add_u32 v{V_LI+jj}, v4, 4, v3
        """)
    a.label("L_LD2_GO")

    def seq_init():
        a(f"""
        s_mov_b32 s{S_N}, s{S_N1s}
        s_mov_b32 s{S_KB}, s{S_KB1s}
        s_mov_b32 s{S_POS}, s{S_ROT1}
        s_mov_b32 s{S_C}, 0
        s_mov_b32 s{S_N2}, s{S_N2s}
        s_mov_b32 s{S_DB}, s{S_DB0}
        s_mov_b32 s{R_I}, s{S_I1}
        s_mov_b32 s{R_I+1}, s{S_I1+1}
        s_mov_b32 s{R_I+2}, s{S_ISZ}
        s_mov_b32 s{R_I+3}, 0x20000
        s_mov_b32 s{R_D}, s{P_WS}
        s_and_b32 s{R_D+1}, s{P_WS+1}, 0xffff
        s_mov_b32 s{R_D+2}, {WS_SIZE}
        s_mov_b32 s{R_D+3}, 0x20000
        s_mov_b32 s{S_SLOT}, s{S_W1K}
        """)
        if OPT['noload'] & 1:
            a(f"s_mov_b32 s{R_I+2}, 0")
        if OPT['noload'] & 2:
            a(f"s_mov_b32 s{R_D+2}, 0")

    def seq_issue(indep, dep):
        a(f"""
        s_add_u32 s{S_T0}, s{S_KB}, s{S_POS}
        s_mul_i32 s{S_IO}, s{S_T0}, s{S_IST}
        s_lshl_b32 s{S_DO}, s{S_T0}, 14
        s_add_u32 s{S_DO}, s{S_DO}, s{S_DB}
        """)
        if dep:
            for jj in range(4):
                dma(a, S_SLOT, jj * 4096, V_LA + jj, R_D, S_DO, SL)
        if indep:
            for jj in range(4):
                dma(a, S_SLOT, 81920 + jj * 4096, V_LI + jj, R_I, S_IO)
        sk = a.newlabel("Lseq")
        a(f"""
        s_add_u32 s{S_SLOT}, s{S_SLOT}, 16384
        s_sub_u32 s{S_T0}, s{S_SLOT}, 81920
        s_cmp_ge_u32 s{S_SLOT}, 81920
        s_cselect_b32 s{S_SLOT}, s{S_T0}, s{S_SLOT}
        s_add_u32 s{S_POS}, s{S_POS}, 1
        s_cmp_eq_u32 s{S_POS}, s{S_N}
        s_cselect_b32 s{S_POS}, 0, s{S_POS}
        s_add_u32 s{S_C}, s{S_C}, 1
        s_cmp_lg_u32 s{S_C}, s{S_N}
        s_cbranch_scc1 {sk}
        s_mov_b32 s{S_N}, s{S_N2}
        s_mov_b32 s{S_KB}, 0
        s_mov_b32 s{S_POS}, s{S_ROT2}
        s_mov_b32 s{S_C}, 0
        s_mov_b32 s{R_I}, s{S_I2}
        s_mov_b32 s{R_I+1}, s{S_I2+1}
        s_add_u32 s{S_DB}, s{S_DB}, {2<<20}
        s_cmp_eq_u32 s{S_N2}, 0
        s_cselect_b32 s{R_I+2}, 0, s{R_I+2}
        s_cselect_b32 s{R_D+2}, 0, s{R_D+2}
        s_mov_b32 s{S_N2}, 0
        """)
        a.label(sk)

    seq_init()
    a("s_barrier")
    a(f"s_mov_b32 s{S_X+4}, 5")
    a.label("L_LD2_PRE")
    seq_issue(True, False)
    a(f"s_sub_u32 s{S_X+4}, s{S_X+4}, 1")
    a(f"s_cmp_lg_u32 s{S_X+4}, 0")
    a("s_cbranch_scc1 L_LD2_PRE")

    a.label("L_EPI1")
    p2_scalar_setup()
    V_E = 96
    a(f"s_cmp_eq_u32 s{S_MLP}, 1")
    a("s_cbranch_scc1 L_EPI1_MLP")
    a(f"""
    v_lshlrev_b32 v{V_E}, 4, v0
    v_and_b32 v{V_E+1}, 255, v0
    v_lshlrev_b32 v{V_E+1}, 4, v{V_E+1}
    v_lshrrev_b32 v{V_E+2}, 8, v0
    v_lshl_add_u32 v{V_E+1}, v{V_E+2}, 14, v{V_E+1}
    s_barrier
    """)
    for u in range(5):
        a(f"ds_read_b128 v[{V_E+4+4*u}:{V_E+7+4*u}], v{V_E} offset:{u*8192}")
    for u in range(5):
        if u == 4:
            a(f"s_cmp_lt_u32 s{S_CNT}, 5")
            a("s_cbranch_scc1 L_EPI1_DONE")
        a(f"""
        s_add_u32 s{S_T0}, s{S_U0}, {u}
        s_lshr_b32 s{S_T1}, s{S_T0}, 2
        s_lshl_b32 s{S_T1}, s{S_T1}, 19
        s_and_b32 s{S_T0}, s{S_T0}, 3
        s_lshl_b32 s{S_T0}, s{S_T0}, 12
        s_add_u32 s{S_T0}, s{S_T0}, s{S_T1}
        s_lshl_b32 s{S_T1}, s{S_R}, 15
        s_add_u32 s{S_T0}, s{S_T0}, s{S_T1}
        s_add_u32 s{S_T0}, s{S_T0}, {WS_AB}
        s_waitcnt lgkmcnt({4-u})
        buffer_store_dwordx4 v[{V_E+4+4*u}:{V_E+7+4*u}], v{V_E+1}, s[{R_WS}:{R_WS+3}], s{S_T0} offen {SP}
        """)
    a("s_branch L_EPI1_DONE")
    a.label("L_EPI1_MLP")
    V_D = V_E + 24
    V_W = V_E + 44
    a(f"""
    v_and_b32 v{V_E+2}, 3, v0
    v_lshlrev_b32 v{V_E+3}, 4, v{V_E+2}
    """)
    a(f"""
    v_lshrrev_b32 v{V_E+1}, 2, v0              ; row
    s_movk_i32 s{S_T0}, 336
    v_mul_lo_u32 v{V_E}, v{V_E+1}, s{S_T0}
    v_add_u32 v{V_E}, v{V_E}, v{V_E+3}
    v_bfe_u32 v{V_E+3}, v0, 3, 3               ; (row>>1)&7
    v_xor_b32 v{V_E+3}, v{V_E+3}, v{V_E+2}
    v_lshlrev_b32 v{V_E+1}, 7, v{V_E+1}
    v_lshl_add_u32 v{V_E+1}, v{V_E+3}, 4, v{V_E+1}   ; v_even
    s_barrier
    """)
    for u in range(5):
        a(f"ds_read_b128 v[{V_D+4*u}:{V_D+4*u+3}], v{V_E} offset:{u*64}")
    K0 = -2.0 * math.log2(math.e) * 0.7978845608028654
    K1 = K0 * 0.044715
    S_K1 = S_X + 5
    a(f"s_mov_b32 s{S_K1}, {f32hex(K1)}")
    a(f"v_mov_b32 v{V_E+2}, {f32hex(K0)}")
    for u in range(5):
        x = [V_W + i for i in range(8)]
        e = [V_W + 8 + i for i in range(8)]
        pk = V_W + 16 + 4 * (u % 2)
        if u == 4:
            a(f"s_cmp_eq_u32 s{S_CNT}, 5")
            a("s_cbranch_scc1 L_EPI1_U4")
            a(f"s_cmp_eq_u32 s{S_U0}, 39")
            a("s_cbranch_scc0 L_EPI1_DONE")
            for i in range(4):
                a(f"v_mov_b32 v{pk+i}, 0")
            a("s_branch L_EPI1_U4ST")
            a.label("L_EPI1_U4")
        a(f"s_waitcnt lgkmcnt({4-u})")
        for i in range(4):
            a(f"v_lshlrev_b32 v{x[2*i]}, 16, v{V_D+4*u+i}")
            a(f"v_and_b32 v{x[2*i+1]}, 0xffff0000, v{V_D+4*u+i}")
            a(f"v_lshlrev_b32 v{e[2*i]}, 16, v{V_BI+4*u+i}")
            a(f"v_and_b32 v{e[2*i+1]}, 0xffff0000, v{V_BI+4*u+i}")
        for i in range(8):
            a(f"v_add_f32 v{x[i]}, v{x[i]}, v{e[i]}")
        for i in range(4):
            bf16_round_pair(a, x[2*i], x[2*i+1], e[i])
        for i in range(8):
            a(f"v_mul_f32 v{e[i]}, v{x[i]}, v{x[i]}")
        for i in range(8):
            a(f"v_fma_f32 v{e[i]}, v{e[i]}, s{S_K1}, v{V_E+2}")
        for i in range(8):
            a(f"v_mul_f32 v{e[i]}, v{e[i]}, v{x[i]}")
        for i in range(8):
            a(f"v_exp_f32 v{e[i]}, v{e[i]}")
        for i in range(8):
            a(f"v_add_f32 v{e[i]}, 1.0, v{e[i]}")
        for i in range(8):
            a(f"v_rcp_f32 v{e[i]}, v{e[i]}")
        for i in range(8):
            a(f"v_mul_f32 v{x[i]}, v{x[i]}, v{e[i]}")
        for i in range(4):
            a(f"v_cvt_pk_bf16_f32 v{pk+i}, v{x[2*i]}, v{x[2*i+1]}")
        if u == 4:
            a.label("L_EPI1_U4ST")
        a(f"""
        s_add_u32 s{S_T0}, s{S_U0}, {u}
        s_and_b32 s{S_T1}, s{S_T0}, 1
        s_lshl_b32 s{S_T1}, s{S_T1}, 6
        v_xor_b32 v{V_E+3}, s{S_T1}, v{V_E+1}
        s_lshr_b32 s{S_T0}, s{S_T0}, 1
        s_mul_i32 s{S_T1}, s{S_R}, 22
        s_add_u32 s{S_T0}, s{S_T0}, s{S_T1}
        s_lshl_b32 s{S_T0}, s{S_T0}, 14
        s_add_u32 s{S_T0}, s{S_T0}, {WS_H}
        buffer_store_dwordx4 v[{pk}:{pk+3}], v{V_E+3}, s[{R_WS}:{R_WS+3}], s{S_T0} offen {SP}
        """)
    a.label("L_EPI1_DONE")
    a("s_waitcnt vmcnt(0) lgkmcnt(0)")
    a("s_barrier")
    a(f"v_readfirstlane_b32 s{S_T0}, v0")
    a("s_nop 3")
    a(f"s_cmp_lg_u32 s{S_T0}, 0")
    a("s_cbranch_scc1 L_S2DONE")
    stamp(a, "epi1 done")
    flag_store(a, 2, V_E, V_E + 1)
    a(f"v_lshlrev_b32 v{V_E}, 6, v1")
    a(f"v_add_u32 v{V_E}, {WS_FLAG + 2*16384}, v{V_E}")
    poll(a, V_E, 4, V_E + 1)
    stamp(a, "S2 done")
    a.label("L_S2DONE")
    a("s_barrier")
    a(f"v_readfirstlane_b32 s{S_T0}, v0")
    a("s_nop 3")
    a(f"s_cmp_ge_u32 s{S_T0}, 256")
    a("s_cbranch_scc1 L_LOADER2")

    V_FR2 = 16
    S_G2, S_TM1, S_SW, S_SL2, S_PO = S_X, S_X + 1, S_X + 2, S_X + 3, S_X + 4
    frag_pattern(a, P, V_T, V_T + 1)
    a(f"""
    v_and_b32 v{V_T}, 1, v2
    v_lshlrev_b32 v{V_T}, 13, v{V_T}          ; wm*8192
    v_lshrrev_b32 v{V_T+1}, 1, v2
    v_lshlrev_b32 v{V_T+1}, 13, v{V_T+1}      ; wn*8192
    s_mov_b32 s{S_G2}, 0
    s_mov_b32 s{S_SL2}, 0
    s_and_b32 s{S_T0}, s{S_ROLE}, 1
    s_lshr_b32 s{S_T1}, s{S_ROLE}, 1
    s_xor_b32 s{S_T0}, s{S_T0}, s{S_T1}
    s_sub_u32 s{S_TM1}, 21, s{S_T0}
    s_cmp_eq_u32 s{S_ROLE}, 1
    s_cselect_b32 s{S_SW}, 9, 99
    s_lshl_b32 s{S_T0}, s{S_TT}, 2
    s_add_u32 s{S_T0}, s{S_T0}, s{S_ET}
    s_mul_i32 s{S_T0}, s{S_T0}, 5
    s_add_u32 s{S_T0}, s{S_T0}, s{S_ROLE}
    s_add_u32 s{S_T0}, s{S_T0}, s{S_T1}
    s_lshl_b32 s{S_T0}, s{S_T0}, 2
    s_add_u32 s{S_T0}, s{S_T0}, s{S_WAVE}
    s_lshl_b32 s{S_T0}, s{S_T0}, 14
    s_add_u32 s{S_PO}, s{S_T0}, {WS_P}
    v_lshlrev_b32 v{V_T+4}, 4, v1
    v_add_u32 v{V_T+5}, 4096, v{V_T+4}
    v_add_u32 v{V_T+6}, 8192, v{V_T+4}
    v_add_u32 v{V_T+7}, 12288, v{V_T+4}
    """)
    for i in range(64):
        a(f"v_accvgpr_write_b32 a{i}, 0")

    def store_partial():
        a("s_nop 7")
        a("s_nop 4")
        for q in range(16):
            a(f"buffer_store_dwordx4 a[{4*q}:{4*q+3}], v{V_T+4+q//4}, s[{R_WS}:{R_WS+3}], s{S_PO} offen offset:{1024*(q%4)} {SP}")

    a(f"s_cmp_eq_u32 s{S_ROLE}, 3")
    a("s_cbranch_scc1 L_P2_MLP")

    def p2_loop(mlp):
        tagn = "M" if mlp else "D"
        if not mlp:
            for kk in range(4):
                a(f"v_add_u32 v{V_PA+kk}, v{P[kk]}, v{V_T}")
                a(f"v_add_u32 v{V_PB+kk}, v{P[kk]}, v{V_T+1}")
                a(f"v_add_u32 v{V_PB+kk}, 81920, v{V_PB+kk}")
            na = 4
        else:
            for kk in range(4):
                a(f"v_add_u32 v{V_PB+kk}, v{P[kk]}, v{V_T+1}")
            a(f"""
            v_lshrrev_b32 v{V_T+2}, 5, v1
            v_lshlrev_b32 v{V_T+2}, 3, v{V_T+2}
            v_bfe_u32 v{V_T+3}, v1, 2, 2              ; r
            v_add_u32 v{V_T+2}, v{V_T+2}, v{V_T+3}    ; row
            v_lshlrev_b32 v{V_T+3}, 2, v{V_T+3}       ; r<<2
            v_and_b32 v{V_PA}, 1, v2
            v_lshlrev_b32 v{V_PA}, 3, v{V_PA}         ; 8wm
            v_bfe_u32 v{V_PA+1}, v1, 4, 1
            v_lshl_add_u32 v{V_PA}, v{V_PA+1}, 1, v{V_PA}
            v_bfe_u32 v{V_PA+1}, v1, 1, 1
            v_add_u32 v{V_PA}, v{V_PA}, v{V_PA+1}     ; chunk
            v_xor_b32 v{V_PA}, v{V_PA}, v{V_T+3}
            v_lshlrev_b32 v{V_PA}, 4, v{V_PA}
            v_lshl_add_u32 v{V_PA}, v{V_T+2}, 8, v{V_PA}
            v_and_b32 v{V_PA+1}, 1, v1
            v_lshl_add_u32 v{V_PA}, v{V_PA+1}, 3, v{V_PA}
            v_add_u32 v{V_PA}, 81920, v{V_PA}
            v_xor_b32 v{V_PA+1}, 64, v{V_PA}
            """)
            na = 2

        def addr():
            for kk in range(na):
                a(f"v_add_u32 v{V_RA+kk}, s{S_SL2}, v{V_PA+kk}")
            for kk in range(4):
                a(f"v_add_u32 v{V_RB+kk}, s{S_SL2}, v{V_PB+kk}")

        def read_list(buf):
            L = []
            if OPT['noread']:
                return L
            base = V_FR2 + buf * 64
            for kk in range(4):
                b = base + 16 * kk
                if not mlp:
                    L.append(f"ds_read_b128 v[{b}:{b+3}], v{V_RA+kk}")
                    L.append(f"ds_read_b128 v[{b+8}:{b+11}], v{V_RB+kk}")
                    L.append(f"ds_read_b128 v[{b+4}:{b+7}], v{V_RA+kk} offset:4096")
                    L.append(f"ds_read_b128 v[{b+12}:{b+15}], v{V_RB+kk} offset:4096")
                else:
                    for mi in range(2):
                        L.append(f"ds_read_b64_tr_b16 v[{b+4*mi}:{b+4*mi+1}], v{V_RA+mi} offset:{kk*4096}")
                        L.append(f"ds_read_b64_tr_b16 v[{b+4*mi+2}:{b+4*mi+3}], v{V_RA+mi} offset:{kk*4096+1024}")
                        L.append(f"ds_read_b128 v[{b+8+4*mi}:{b+11+4*mi}], v{V_RB+kk} offset:{4096*mi}")
            return L

        def mfma_list(buf):
            L = []
            base = V_FR2 + buf * 64
            for kk in range(4):
                b = base + 16 * kk
                for mi in range(2):
                    for ni in range(2):
                        ac = 16 * (mi * 2 + ni)
                        if OPT['nomfma']:
                            L.append("s_nop 0")
                        else:
                            L.append(f"v_mfma_f32_32x32x16_bf16 a[{ac}:{ac+15}], v[{b+4*mi}:{b+4*mi+3}], v[{b+8+4*ni}:{b+8+4*ni+3}], a[{ac}:{ac+15}]")
            return L

        def adv():
            a(f"""
            s_add_u32 s{S_SL2}, s{S_SL2}, 16384
            s_cmp_eq_u32 s{S_SL2}, 81920
            s_cselect_b32 s{S_SL2}, 0, s{S_SL2}
            """)
            addr()

        NG = OPT['p2_ng']
        NB = OPT['p2_nb']
        addr()
        a("s_barrier")
        stamp(a, "P0")
        for r in read_list(0):
            a(r)
        a("s_waitcnt lgkmcnt(0)")
        adv()
        a("s_barrier")
        a.label(f"L_P2{tagn}_LOOP")
        for cur in range(2):
            a(f"s_cmp_eq_u32 s{S_G2}, s{S_TM1}")
            a(f"s_cbranch_scc1 L_P2{tagn}_LAST{cur}")
            R = read_list(1 - cur)
            M = mfma_list(cur)
            per = (len(R) + NG - 1) // NG
            for i in range(16):
                if i == NB:
                    sk = a.newlabel("Lnb")
                    a("s_waitcnt lgkmcnt(0)")
                    adv()
                    a(f"s_add_u32 s{S_T0}, s{S_G2}, 1")
                    a(f"s_cmp_eq_u32 s{S_T0}, s{S_TM1}")
                    a(f"s_cbranch_scc1 {sk}")
                    a("s_barrier")
                    a.label(sk)
                a(M[i])
                for r in R[i * per:(i + 1) * per]:
                    a(r)
            if not mlp:
                sk = a.newlabel("Lsw")
                a(f"s_cmp_lg_u32 s{S_G2}, s{S_SW}")
                a(f"s_cbranch_scc1 {sk}")
                store_partial()
                a("s_nop 1")
                for i in range(64):
                    a(f"v_accvgpr_write_b32 a{i}, 0")
                a(f"s_add_u32 s{S_PO}, s{S_PO}, 65536")
                a.label(sk)
            a(f"s_add_u32 s{S_G2}, s{S_G2}, 1")
        a(f"s_branch L_P2{tagn}_LOOP")
        for cur in range(2):
            a.label(f"L_P2{tagn}_LAST{cur}")
            for m in mfma_list(cur):
                a(m)
            a("s_branch L_P2_STORE")

    p2_loop(False)
    a.label("L_P2_MLP")
    p2_loop(True)
    a.label("L_P2_STORE")
    stamp(a, "P2 loop done")
    store_partial()
    a("s_branch L_X")

    a.label("L_LOADER2")
    seq_init()
    a(f"s_mov_b32 s{S_X+4}, 5")
    a.label("L_LD2_DEP")
    seq_issue(False, True)
    a(f"s_sub_u32 s{S_X+4}, s{S_X+4}, 1")
    a(f"s_cmp_lg_u32 s{S_X+4}, 0")
    a("s_cbranch_scc1 L_LD2_DEP")
    a("s_waitcnt vmcnt(16)")
    a("s_barrier")
    for n in (12, 16, 20):
        a(f"s_waitcnt vmcnt({n})")
        a("s_barrier")
        seq_issue(True, True)
    a(f"""
    s_and_b32 s{S_T0}, s{S_ROLE}, 1
    s_lshr_b32 s{S_T1}, s{S_ROLE}, 1
    s_xor_b32 s{S_T0}, s{S_T0}, s{S_T1}
    s_sub_u32 s{S_X+4}, 18, s{S_T0}
    """)
    a.label("L_LD2_LOOP")
    a("s_waitcnt vmcnt(24)")
    a("s_barrier")
    seq_issue(True, True)
    a(f"s_sub_u32 s{S_X+4}, s{S_X+4}, 1")
    a(f"s_cmp_lg_u32 s{S_X+4}, 0")
    a("s_cbranch_scc1 L_LD2_LOOP")

    a.label("L_X")
    V_P = 16
    V_XX, V_BB = 56, 60
    V_O, V_PO, V_TT = 64, 65, 66
    srd_from(a, R_A, P_X, 2048 * 1024)
    srd_from(a, R_B, P_B2, 1024)
    a(f"""
    v_lshrrev_b32 v2, 6, v0
    s_and_b32 s{S_T0}, s{S_ROLE}, 1
    s_lshl_b32 s{S_T0}, s{S_T0}, 6
    s_lshl_b32 s{S_T1}, s{S_ET}, 7
    s_add_u32 s{S_T0}, s{S_T0}, s{S_T1}
    v_lshrrev_b32 v{V_TT}, 2, v2
    v_lshlrev_b32 v{V_TT}, 5, v{V_TT}
    v_and_b32 v{V_TT+1}, 1, v2
    v_lshl_add_u32 v{V_TT}, v{V_TT+1}, 4, v{V_TT}
    v_add_u32 v{V_TT}, s{S_T0}, v{V_TT}            ; e0 + 16h
    v_lshrrev_b32 v{V_TT+1}, 5, v1
    v_lshl_add_u32 v{V_TT+2}, v{V_TT+1}, 2, v{V_TT}  ; eA
    v_lshl_add_u32 v{V_TT+3}, v{V_TT+1}, 3, v{V_TT}  ; e store
    v_lshlrev_b32 v{V_TT+2}, 1, v{V_TT+2}
    v_lshlrev_b32 v{V_TT+3}, 1, v{V_TT+3}
    s_lshr_b32 s{S_T0}, s{S_ROLE}, 1
    s_lshl_b32 s{S_T0}, s{S_T0}, 6
    s_lshl_b32 s{S_T1}, s{S_TT}, 7
    s_add_u32 s{S_T0}, s{S_T0}, s{S_T1}
    v_bfe_u32 v{V_TT}, v2, 1, 1
    v_lshlrev_b32 v{V_TT}, 5, v{V_TT}
    v_and_b32 v{V_TT+1}, 31, v1
    v_add_u32 v{V_TT}, v{V_TT}, v{V_TT+1}
    v_add_u32 v{V_TT}, s{S_T0}, v{V_TT}            ; t
    v_lshl_add_u32 v{V_O}, v{V_TT}, 10, v{V_TT+3}
    v_lshl_add_u32 v{V_TT+1}, v{V_TT}, 10, v{V_TT+2}
    s_waitcnt vmcnt(0)
    buffer_load_dwordx2 v[{V_XX}:{V_XX+1}], v{V_TT+1}, s[{R_A}:{R_A+3}], 0 offen
    buffer_load_dwordx2 v[{V_XX+2}:{V_XX+3}], v{V_TT+1}, s[{R_A}:{R_A+3}], 0 offen offset:16
    buffer_load_dwordx2 v[{V_BB}:{V_BB+1}], v{V_TT+2}, s[{R_B}:{R_B+3}], 0 offen
    buffer_load_dwordx2 v[{V_BB+2}:{V_BB+3}], v{V_TT+2}, s[{R_B}:{R_B+3}], 0 offen offset:16
    v_lshlrev_b32 v{V_PO}, 4, v1
    v_lshl_add_u32 v{V_PO}, v2, 11, v{V_PO}
    s_lshl_b32 s{S_T0}, s{S_TT}, 2
    s_add_u32 s{S_T0}, s{S_T0}, s{S_ET}
    s_mul_i32 s{S_T0}, s{S_T0}, 20
    s_add_u32 s{S_T0}, s{S_T0}, s{S_ROLE}
    s_lshl_b32 s{S_T0}, s{S_T0}, 14
    s_add_u32 s{S_X}, s{S_T0}, {WS_P}
    s_barrier
    v_readfirstlane_b32 s{S_T0}, v0
    s_nop 3
    s_cmp_lg_u32 s{S_T0}, 0
    s_cbranch_scc1 L_S3DONE
    """)
    stamp(a, "partials stored")
    flag_store(a, 3, V_TT + 4, V_TT + 5)
    a(f"""
    s_and_b32 s{S_T0}, s2, 0xfc
    v_and_b32 v{V_TT+4}, 3, v1
    v_or_b32 v{V_TT+4}, s{S_T0}, v{V_TT+4}
    v_lshlrev_b32 v{V_TT+4}, 6, v{V_TT+4}
    v_add_u32 v{V_TT+4}, {WS_FLAG + 3*16384}, v{V_TT+4}
    """)
    poll(a, V_TT + 4, 1, V_TT + 5)
    stamp(a, "S3 done")
    a.label("L_S3DONE")
    a("s_barrier")
    for sl in range(5):
        for hh in range(2):
            d = V_P + 8 * sl + 4 * hh
            a(f"buffer_load_dwordx4 v[{d}:{d+3}], v{V_PO}, s[{R_WS}:{R_WS+3}], s{S_X} offen offset:{1024*hh} {SL}")
        if sl < 4:
            a(f"s_add_u32 s{S_X}, s{S_X}, 65536")
    srd_from(a, R_A, P_OUT, 2048 * 1024)
    a(f"s_mov_b32 s{S_X+1}, 0xbfb8aa3b")
    a("s_waitcnt vmcnt(0)")
    re_, im_, oo_ = V_P, V_P + 16, V_P + 32
    tt = V_TT + 4
    E = [72 + i for i in range(8)]
    for i in range(8):
        a(f"v_add_f32 v{re_+i}, v{re_+i}, v{re_+8+i}")
        a(f"v_add_f32 v{im_+i}, v{im_+i}, v{im_+8+i}")
    for i in range(0, 8, 2):
        bf16_round_pair(a, re_ + i, re_ + i + 1, tt)
        bf16_round_pair(a, im_ + i, im_ + i + 1, tt)
        bf16_round_pair(a, oo_ + i, oo_ + i + 1, tt)
    for i in range(8):
        a(f"v_sub_f32 v{re_+i}, v{re_+i}, v{im_+i}")
        src = V_BB + i // 2
        if i % 2 == 0:
            a(f"v_lshlrev_b32 v{tt}, 16, v{src}")
        else:
            a(f"v_and_b32 v{tt}, 0xffff0000, v{src}")
        a(f"v_add_f32 v{oo_+i}, v{oo_+i}, v{tt}")
    for i in range(0, 8, 2):
        bf16_round_pair(a, re_ + i, re_ + i + 1, tt)
        bf16_round_pair(a, oo_ + i, oo_ + i + 1, tt)
    for i in range(8):
        a(f"v_mul_f32 v{E[i]}, s{S_X+1}, v{oo_+i}")
    for i in range(8):
        a(f"v_exp_f32 v{E[i]}, v{E[i]}")
    for i in range(8):
        a(f"v_add_f32 v{E[i]}, 1.0, v{E[i]}")
    for i in range(8):
        a(f"v_rcp_f32 v{E[i]}, v{E[i]}")
    for i in range(8):
        a(f"v_mul_f32 v{oo_+i}, v{oo_+i}, v{E[i]}")
    for i in range(0, 8, 2):
        bf16_round_pair(a, oo_ + i, oo_ + i + 1, tt)
    for i in range(8):
        a(f"v_mul_f32 v{re_+i}, v{re_+i}, v{oo_+i}")
    for i in range(0, 8, 2):
        bf16_round_pair(a, re_ + i, re_ + i + 1, tt)
    for i in range(8):
        src = V_XX + i // 2
        if i % 2 == 0:
            a(f"v_lshlrev_b32 v{tt}, 16, v{src}")
        else:
            a(f"v_and_b32 v{tt}, 0xffff0000, v{src}")
        a(f"v_add_f32 v{re_+i}, v{re_+i}, v{tt}")
    pk = 80
    for i in range(4):
        a(f"v_cvt_pk_bf16_f32 v{pk+i}, v{re_+2*i}, v{re_+2*i+1}")
    a("s_nop 1")
    a(f"v_permlane32_swap_b32 v{pk}, v{pk+2}")
    a(f"v_permlane32_swap_b32 v{pk+1}, v{pk+3}")
    a("s_nop 1")
    a(f"buffer_store_dwordx4 v[{pk}:{pk+3}], v{V_O}, s[{R_A}:{R_A+3}], 0 offen")
    if OPT['stamp']:
        a(f"v_readfirstlane_b32 s{S_T0}, v0")
        a("s_nop 3")
        a(f"s_cmp_lg_u32 s{S_T0}, 0")
        a("s_cbranch_scc1 L_END")
        a("s_waitcnt vmcnt(0)")
        stamp(a, "end")
        a(f"s_lshl_b32 s{S_T0}, s2, 6")
        a(f"s_add_u32 s{S_T0}, s{S_T0}, {WS_ST}")
        a("v_mov_b32 v3, 0")
        a("s_mov_b64 exec, 1")
        for i in range(NSTAMP[0]):
            a(f"v_mov_b32 v4, s{S_STAMP+i}")
            a(f"buffer_store_dword v4, v3, s[{R_WS}:{R_WS+3}], s{S_T0} offen offset:{4*i}")
    a.label("L_END")
    a("s_endpgm")


def main(out):
    a = Asm()
    hdr = f"""; generated by gen/gen2.py
; @launch grid=(256,1,1) block=(512,1,1) lds=163840
.amdgcn_target "amdgcn-amd-amdhsa--gfx950"
.text
"""
    gen(a)
    desc = f""".section .rodata,"a"
.p2align 6
.amdhsa_kernel {KNAME}
  .amdhsa_next_free_vgpr 256
  .amdhsa_next_free_sgpr 102
  .amdhsa_accum_offset 192
  .amdhsa_group_segment_fixed_size 0
  .amdhsa_kernarg_size 104
  .amdhsa_user_sgpr_count 2
  .amdhsa_user_sgpr_kernarg_segment_ptr 1
  .amdhsa_system_sgpr_workgroup_id_x 1
.end_amdhsa_kernel
"""
    open(out, "w").write(hdr + a.text() + desc)


if __name__ == "__main__":
    main(sys.argv[1] if len(sys.argv) > 1 else "p1.s")
```

```python
import sys, math, os, json, struct

OPT = dict(stamp=0, map=0, split=5, statpos=0, pd=2)
OPT.update(json.loads(os.environ.get('GEN_OPT', '{}')))

KNAME = "recurrent_scan__spectral_fnet__mixer_channel_mlp__prompt_kernel"
WS_FLAG = 0
WS_STAT = 0x40000
WS_V = 0x60000
WS_DUMMY = 0x80000
WS_AB = 0x100000
AB_KP = 4224
AB_PART = 64 * AB_KP
WS_H = 0x400000
H_RK = 86 * 2048
WS_ST = 0x3000000
WS_SIZE = 268435456
SC = "sc0 sc1"
SP = "sc1"

SLOT = 32768
L_W1 = 16384
L_WD = 28672
L_SPARE = 131072
L_MISC = 155648
L_EX = 131072
L_ALT = 139264


def f32hex(x):
    return "0x%08x" % struct.unpack("<I", struct.pack("<f", x))[0]


class Asm:
    def __init__(self):
        self.lines = []
        self.nl = 0

    def __call__(self, s):
        for l in s.strip().split("\n"):
            self.lines.append("    " + l.strip())

    def label(self, l):
        self.lines.append(l + ":")

    def newlabel(self, p="L"):
        self.nl += 1
        return f"{p}_{self.nl}"

    def raw(self, s):
        self.lines.append(s)

    def text(self):
        return "\n".join(self.lines) + "\n"


class Fifo:
    def __init__(self, a, kind, maxn):
        self.a, self.kind, self.maxn = a, kind, maxn
        self.q = []

    def issue(self, asm, tag=None):
        self.a(asm)
        self.q.append(tag)

    def wait(self, tags):
        if not isinstance(tags, (list, set)):
            tags = [tags]
        idx = [i for i, t in enumerate(self.q) if t in tags]
        if not idx:
            return
        n = len(self.q) - 1 - max(idx)
        self.a(f"s_waitcnt {self.kind}({min(n, self.maxn)})")
        del self.q[:max(idx) + 1]

    def drain(self):
        self.a(f"s_waitcnt {self.kind}(0)")
        self.q = []


def srd_from(a, d, lo, size):
    a(f"s_mov_b32 s{d}, s{lo}")
    a(f"s_and_b32 s{d+1}, s{lo+1}, 0xffff")
    a(f"s_mov_b32 s{d+2}, {size}")
    a(f"s_mov_b32 s{d+3}, 0x20000")


DPP = "row_mask:0xf bank_mask:0xf"


def wave_reduce(a, v, t):
    a("s_nop 1")
    a(f"v_add_f32_dpp v{t}, v{v}, v{v} quad_perm:[1,0,3,2] " + DPP)
    a("s_nop 1")
    a(f"v_add_f32_dpp v{v}, v{t}, v{t} quad_perm:[2,3,0,1] " + DPP)
    a("s_nop 1")
    a(f"v_add_f32_dpp v{t}, v{v}, v{v} row_half_mirror " + DPP)
    a("s_nop 1")
    a(f"v_add_f32_dpp v{v}, v{t}, v{t} row_mirror " + DPP)
    a("s_nop 1")
    a(f"v_mov_b32 v{t}, v{v}")
    a("s_nop 1")
    a(f"v_permlane16_swap_b32 v{v}, v{t}")
    a("s_nop 1")
    a(f"v_add_f32 v{v}, v{v}, v{t}")
    a(f"v_mov_b32 v{t}, v{v}")
    a("s_nop 1")
    a(f"v_permlane32_swap_b32 v{v}, v{t}")
    a("s_nop 1")
    a(f"v_add_f32 v{v}, v{v}, v{t}")


def half_sum(a, v, t):
    a(f"v_mov_b32 v{t}, v{v}")
    a("s_nop 1")
    a(f"v_permlane32_swap_b32 v{v}, v{t}")
    a("s_nop 1")
    a(f"v_add_f32 v{v}, v{v}, v{t}")


def ln_stats(a, f, s, t, mean, q, d, rr, elementwise):
    a(f"v_add_f32 v{s}, v{f[0]}, v{f[1]}")
    a(f"v_add_f32 v{q}, v{f[2]}, v{f[3]}")
    a(f"v_add_f32 v{d}, v{f[4]}, v{f[5]}")
    a(f"v_add_f32 v{t}, v{f[6]}, v{f[7]}")
    a(f"v_add_f32 v{s}, v{s}, v{q}")
    a(f"v_add_f32 v{d}, v{d}, v{t}")
    a(f"v_add_f32 v{s}, v{s}, v{d}")
    wave_reduce(a, s, t)
    a(f"v_mul_f32 v{mean}, 0x3b000000, v{s}")
    a(f"v_sub_f32 v{d}, v{f[0]}, v{mean}")
    a(f"v_sub_f32 v{t}, v{f[1]}, v{mean}")
    a(f"v_mul_f32 v{q}, v{d}, v{d}")
    a(f"v_mul_f32 v{s}, v{t}, v{t}")
    for i in range(2, 8, 2):
        a(f"v_sub_f32 v{d}, v{f[i]}, v{mean}")
        a(f"v_sub_f32 v{t}, v{f[i+1]}, v{mean}")
        a(f"v_fmac_f32 v{q}, v{d}, v{d}")
        a(f"v_fmac_f32 v{s}, v{t}, v{t}")
    a(f"v_add_f32 v{q}, v{q}, v{s}")
    wave_reduce(a, q, t)
    a(f"v_mul_f32 v{q}, 0x3b000000, v{q}")
    a(f"v_cvt_pk_bf16_f32 v{t}, v{mean}, v{q}")
    a(f"v_lshlrev_b32 v{mean}, 16, v{t}")
    a(f"v_and_b32 v{q}, 0xffff0000, v{t}")
    a(f"v_add_f32 v{q}, 0x3727c5ac, v{q}")
    a(f"v_cvt_pk_bf16_f32 v{t}, v{q}, v{q}")
    a(f"v_lshlrev_b32 v{q}, 16, v{t}")
    a(f"v_sqrt_f32 v{q}, v{q}")
    a("s_nop 0")
    a(f"v_cvt_pk_bf16_f32 v{t}, v{q}, v{q}")
    a(f"v_lshlrev_b32 v{q}, 16, v{t}")
    a(f"v_rcp_f32 v{rr}, v{q}")
    a("s_nop 0")
    if elementwise:
        for i in range(0, 8, 2):
            a(f"v_sub_f32 v{f[i]}, v{f[i]}, v{mean}")
            a(f"v_sub_f32 v{f[i+1]}, v{f[i+1]}, v{mean}")
            a(f"v_cvt_pk_bf16_f32 v{t}, v{f[i]}, v{f[i+1]}")
            a(f"v_lshlrev_b32 v{f[i]}, 16, v{t}")
            a(f"v_and_b32 v{f[i+1]}, 0xffff0000, v{t}")
            a(f"v_mul_f32 v{f[i]}, v{f[i]}, v{rr}")
            a(f"v_mul_f32 v{f[i+1]}, v{f[i+1]}, v{rr}")
            a(f"v_cvt_pk_bf16_f32 v{t}, v{f[i]}, v{f[i+1]}")
            a(f"v_lshlrev_b32 v{f[i]}, 16, v{t}")
            a(f"v_and_b32 v{f[i+1]}, 0xffff0000, v{t}")


def bf16_round_pair(a, x0, x1, t):
    a(f"v_cvt_pk_bf16_f32 v{t}, v{x0}, v{x1}")
    a(f"v_lshlrev_b32 v{x0}, 16, v{t}")
    a(f"v_and_b32 v{x1}, 0xffff0000, v{t}")


P_X, P_WSR, P_WSI, P_WDR, P_WDI, P_W1, P_B1, P_W2, P_B2, P_OUT, P_DBG, P_WS = 4, 6, 8, 10, 12, 16, 18, 20, 22, 24, 26, 28
S_WAVE, S_R, S_G, S_U, S_RH, S_TAG, S_F0, S_ONES, S_KIND, S_C = 30, 31, 32, 33, 34, 35, 36, 37, 38, 39
S_T0, S_T1, S_T2, S_T3 = 40, 41, 42, 43
R_WS, R_X, R_B, R_C, R_R, R_S = 44, 48, 52, 56, 60, 64
S_STAMP = 68
S_MX, S_MB, S_BO, S_BST, S_XO, S_SROW, S_LUT, S_KS0, S_WB, S_REC = 84, 85, 86, 87, 88, 89, 90, 91, 92, 93
S_MA, S_MBm = 94, 96
S_LO = 98
S_K1, S_U1 = 100, 101
NSTAMP = [0]
STN = {}


def stamp(a, name):
    if not OPT['stamp']:
        return
    if name in STN:
        i = STN[name]
    else:
        i = NSTAMP[0]
        NSTAMP[0] += 1
        STN[name] = i
    assert i < 16
    a(f"s_memrealtime s[{S_T2}:{S_T3}]")
    a("s_waitcnt lgkmcnt(0)")
    a(f"s_mov_b32 s{S_STAMP+i}, s{S_T2}")


def stamp2(a, name):
    if OPT.get('dbg') != 1:
        stamp(a, name)


def vrow(a, row, vs, vi, t0, t1):
    a(f"""
    v_add_u32 v{t0}, 1, v{vi}
    v_lshrrev_b32 v{t0}, 1, v{t0}
    v_lshlrev_b32 v{t0}, 10, v{t0}
    v_cmp_lt_u32 vcc, 1, v{vi}
    v_sub_u32 v{t1}, 0, v{vs}
    s_nop 0
    v_cndmask_b32 v{t1}, v{vs}, v{t1}, vcc
    v_add_u32 v{row}, v{t0}, v{t1}
    v_cmp_eq_u32 vcc, 0, v{vs}
    v_lshlrev_b32 v{t0}, 2, v{vi}
    v_lshrrev_b32_e64 v{t0}, v{t0}, s{S_LUT}
    v_and_b32 v{t0}, 15, v{t0}
    v_lshlrev_b32 v{t0}, 9, v{t0}
    v_cndmask_b32 v{row}, v{row}, v{t0}, vcc
    """)


def beta_to_s(a, vs, vb, t0):
    a(f"""
    v_and_b32 v{vs}, 0x12, v{vb}               ; b4, b1 stay
    v_bfe_u32 v{t0}, v{vb}, 2, 1
    v_lshl_or_b32 v{vs}, v{t0}, 3, v{vs}
    v_bfe_u32 v{t0}, v{vb}, 3, 1
    v_lshl_or_b32 v{vs}, v{t0}, 2, v{vs}
    s_lshl_b32 s{S_T0}, s{S_R}, 5
    s_add_u32 s{S_T0}, s{S_T0}, s{S_KIND}
    v_add_u32 v{vs}, s{S_T0}, v{vs}
    """)


V_X0, V_X1, V_W0, V_W1, V_SP = 2, 3, 4, 5, 6
V_RA, V_RW, V_CS = 7, 11, 15
V_C = 16
V_ACC = 48
V_FR = 80
V_ROW = 104
V_T = 108
V_F3 = 16
A_W2 = 0
A_ACC = 88
A_B1, A_REC, A_ST = 88, 96, 104
A_XT, A_B2 = 120, 124
A_CB = 126


def gen(a):
    a.raw(f".globl {KNAME}")
    a.raw(".p2align 8")
    a.raw(f".type {KNAME},@function")
    a.label(KNAME)
    a(f"""
    s_cmp_ge_u32 s2, 256
    s_cbranch_scc1 L_END
    s_load_dwordx16 s[4:19], s[0:1], 0
    s_load_dwordx8 s[20:27], s[0:1], 64
    s_load_dwordx2 s[28:29], s[0:1], 96
    v_and_b32 v1, 63, v0
    v_lshrrev_b32 v2, 6, v0
    s_nop 0
    v_readfirstlane_b32 s{S_WAVE}, v2
    s_and_b32 s{S_T0}, s2, 7                    ; xcd
    s_lshr_b32 s{S_T1}, s2, 3                   ; idx
    """)
    if OPT['map'] == 0:
        a(f"""
        s_lshl_b32 s{S_R}, s{S_T0}, 1
        s_and_b32 s{S_T2}, s{S_T1}, 1
        s_add_u32 s{S_R}, s{S_R}, s{S_T2}
        s_lshr_b32 s{S_G}, s{S_T1}, 1
        """)
    else:
        a(f"""
        s_lshr_b32 s{S_R}, s{S_T0}, 1
        s_lshl_b32 s{S_R}, s{S_R}, 2
        s_and_b32 s{S_T2}, s{S_T1}, 3
        s_add_u32 s{S_R}, s{S_R}, s{S_T2}
        s_lshr_b32 s{S_G}, s{S_T1}, 2
        s_lshl_b32 s{S_G}, s{S_G}, 1
        s_and_b32 s{S_T2}, s{S_T0}, 1
        s_add_u32 s{S_G}, s{S_G}, s{S_T2}
        """)
    a(f"""
    s_lshr_b32 s{S_U}, s{S_WAVE}, 1
    s_and_b32 s{S_RH}, s{S_WAVE}, 1
    s_lshr_b32 s{S_KIND}, s{S_G}, 3
    s_and_b32 s{S_C}, s{S_G}, 7
    s_mul_i32 s{S_F0}, s{S_G}, 3
    s_lshl_b32 s{S_T0}, s{S_G}, 1
    s_add_u32 s{S_T0}, s{S_T0}, 11
    s_min_u32 s{S_F0}, s{S_F0}, s{S_T0}
    s_mov_b32 s{S_ONES}, 0x3f803f80
    s_mov_b32 s{S_TAG}, 0
    s_movk_i32 s{S_LUT}, 0x2130
    s_mov_b32 s{S_LO}, -1
    s_mov_b32 s{S_LO+1}, 0
    s_lshl_b32 s{S_T0}, s{S_G}, 3
    s_add_u32 s{S_T0}, s{S_T0}, s{S_WAVE}       ; rho
    s_lshl_b32 s{S_T1}, s{S_R}, 7
    s_add_u32 s{S_SROW}, s{S_T1}, s{S_T0}
    s_lshr_b32 s{S_T1}, s{S_T0}, 6
    s_lshl_b32 s{S_T1}, s{S_T1}, 4
    s_bfe_u32 s{S_T2}, s{S_T0}, 0x10002
    s_lshl_b32 s{S_T2}, s{S_T2}, 3
    s_add_u32 s{S_T1}, s{S_T1}, s{S_T2}
    s_bfe_u32 s{S_T2}, s{S_T0}, 0x10005
    s_lshl_b32 s{S_T2}, s{S_T2}, 2
    s_add_u32 s{S_T1}, s{S_T1}, s{S_T2}
    s_bfe_u32 s{S_T2}, s{S_T0}, 0x20003
    s_add_u32 s{S_T1}, s{S_T1}, s{S_T2}
    s_lshl_b32 s{S_T2}, s{S_R}, 5
    s_add_u32 s{S_T1}, s{S_T1}, s{S_T2}         ; s
    s_and_b32 s{S_T0}, s{S_T0}, 3               ; i
    s_add_u32 s{S_T2}, s{S_T0}, 1
    s_lshr_b32 s{S_T2}, s{S_T2}, 1
    s_lshl_b32 s{S_T2}, s{S_T2}, 10
    s_sub_u32 s{S_T3}, 0, s{S_T1}
    s_cmp_gt_u32 s{S_T0}, 1
    s_cselect_b32 s{S_T3}, s{S_T3}, s{S_T1}
    s_add_u32 s{S_T2}, s{S_T2}, s{S_T3}
    s_lshl_b32 s{S_T0}, s{S_T0}, 2
    s_lshr_b32 s{S_T0}, s{S_LUT}, s{S_T0}
    s_and_b32 s{S_T0}, s{S_T0}, 15
    s_lshl_b32 s{S_T0}, s{S_T0}, 9
    s_cmp_eq_u32 s{S_T1}, 0
    s_cselect_b32 s{S_T2}, s{S_T0}, s{S_T2}
    s_lshl_b32 s{S_U1}, s{S_T2}, 10
    v_lshlrev_b32 v{V_T}, 4, v1
    s_lshr_b32 s{S_T0}, s{S_WAVE}, 2
    s_lshl_b32 s{S_T0}, s{S_T0}, 4
    s_and_b32 s{S_T1}, s{S_WAVE}, 3
    s_lshl_b32 s{S_T1}, s{S_T1}, 1
    s_add_u32 s{S_T0}, s{S_T0}, s{S_T1}
    s_lshl_b32 s{S_T1}, s{S_R}, 5
    s_add_u32 s{S_T0}, s{S_T0}, s{S_T1}
    v_lshrrev_b32 v{V_T+1}, 5, v1
    v_lshl_add_u32 v{V_T+1}, v{V_T+1}, 3, s{S_T0}   ; s_0
    v_bfe_u32 v{V_T+2}, v1, 3, 2                    ; i
    v_lshrrev_b32 v{V_T+6}, 4, v1
    v_and_b32 v{V_T+7}, 7, v1
    v_xor_b32 v{V_T+6}, v{V_T+6}, v{V_T+7}
    v_lshlrev_b32 v{V_T+6}, 4, v{V_T+6}
    """)
    vrow(a, V_X0, V_T + 1, V_T + 2, V_T + 3, V_T + 4)
    a(f"v_add_u32 v{V_T+1}, 1, v{V_T+1}")
    vrow(a, V_X1, V_T + 1, V_T + 2, V_T + 3, V_T + 4)
    a(f"""
    v_lshl_add_u32 v{V_X0}, v{V_X0}, 10, v{V_T+6}
    v_xor_b32 v{V_T+7}, 64, v{V_T+6}
    v_lshl_add_u32 v{V_X1}, v{V_X1}, 10, v{V_T+7}
    v_subrev_u32 v{V_X1}, 1024, v{V_X1}
    s_lshl_b32 s{S_MX}, s{S_WAVE}, 11
    s_mov_b32 s{S_XO}, 0
    s_waitcnt lgkmcnt(0)
    """)
    stamp(a, "start")
    srd_from(a, R_X, P_X, 2048 * 1024)
    a(f"buffer_load_dwordx4 v[{V_ROW}:{V_ROW+3}], v{V_T}, s[{R_X}:{R_X+3}], s{S_U1} offen")
    srd_from(a, R_WS, P_WS, WS_SIZE)
    srd_from(a, R_C, P_DBG, 256)
    a(f"""
    s_or_b32 s{S_T0}, s2, s{S_WAVE}
    s_cmp_lg_u32 s{S_T0}, 0
    s_cbranch_scc1 L_NOTAG
    s_memrealtime s[{S_T0}:{S_T1}]
    s_waitcnt lgkmcnt(0)
    s_lshl_b32 s{S_T0}, s{S_T0}, 2
    s_or_b32 s{S_T0}, s{S_T0}, 3
    v_mov_b32 v{V_T+1}, s{S_T0}
    v_mov_b32 v{V_T+2}, 0
    s_mov_b64 exec, 1
    buffer_store_dword v{V_T+1}, v{V_T+2}, s[{R_C}:{R_C+3}], 0 offen {SC}
    s_mov_b64 exec, -1
    """)
    a.label("L_NOTAG")
    a(f"""
    s_cmp_eq_u32 s{S_U}, 3
    s_cbranch_scc1 L_DFT1
    """)

    def ring_dma(vm, g, dft):
        sl = g % 4
        a(f"s_add_u32 m0, s{S_MX}, {sl*SLOT}")
        a("s_nop 0")
        vm.issue(f"buffer_load_dwordx4 v{V_X0}, s[{R_X}:{R_X+3}], s{S_XO} offen lds", ('t', g))
        vm.issue(f"buffer_load_dwordx4 v{V_X1}, s[{R_X}:{R_X+3}], s{S_XO} offen offset:1024 lds", ('t', g))
        a(f"s_add_u32 m0, s{S_MB}, {sl*SLOT}")
        a(f"s_add_u32 s{S_XO}, s{S_XO}, 128")
        if dft:
            a(f"s_mov_b64 exec, s[{S_MA}:{S_MA+1}]")
            vm.issue(f"buffer_load_dwordx4 v{V_W0}, s[{R_B}:{R_B+3}], s{S_BO} offen lds", ('t', g))
            a(f"s_mov_b64 exec, s[{S_MBm}:{S_MBm+1}]")
            vm.issue(f"buffer_load_dwordx4 v{V_SP}, s[{R_R}:{R_R+3}], s{S_BO} offen lds", ('t', g))
            a("s_mov_b64 exec, -1")
        else:
            vm.issue(f"buffer_load_dwordx4 v{V_W0}, s[{R_B}:{R_B+3}], s{S_BO} offen lds", ('t', g))
        vm.issue(f"buffer_load_dwordx4 v{V_W1}, s[{R_B}:{R_B+3}], s{S_BO} offen offset:1024 lds", ('t', g))
        a(f"s_add_u32 s{S_BO}, s{S_BO}, s{S_BST}")

    V_S, V_SR = V_X0, V_X1

    def piece_lds(p):
        if p < 12:
            return 0, (p // 4) * SLOT + (p % 4) * 1024
        if p < 15:
            return 1, L_SPARE + (p - 12) * 1024
        q = p - 15
        return 0, (q // 4) * SLOT + (q % 4) * 1024

    def stage_setup():
        a(f"""
        s_mul_i32 s{S_KS0}, s{S_WAVE}, 11
        s_mul_i32 s{S_T0}, s{S_WAVE}, 10
        s_add_u32 s{S_T0}, s{S_T0}, 6
        s_min_u32 s{S_KS0}, s{S_KS0}, s{S_T0}
        s_lshl_b32 s{S_WB}, s{S_KS0}, 14
        v_lshrrev_b32 v{V_S}, 2, v1
        v_lshlrev_b32 v{V_S}, 10, v{V_S}
        v_and_b32 v{V_SR}, 3, v1
        v_lshl_add_u32 v{V_S}, v{V_SR}, 4, v{V_S}
        v_lshrrev_b32 v{V_SR}, 5, v1
        v_lshlrev_b32 v{V_SR}, 3, v{V_SR}
        v_bfe_u32 v{V_SP}, v1, 2, 2
        v_add_u32 v{V_SR}, v{V_SR}, v{V_SP}
        v_lshlrev_b32 v{V_SR}, 6, v{V_SR}
        v_bfe_u32 v{V_SP}, v1, 4, 1
        v_lshl_add_u32 v{V_SR}, v{V_SP}, 5, v{V_SR}
        v_and_b32 v{V_SP}, 3, v1
        v_lshl_add_u32 v{V_SR}, v{V_SP}, 3, v{V_SR}
        s_mul_i32 s{S_T0}, s{S_WAVE}, 3072
        v_add_u32 v{V_SP}, s{S_T0}, v{V_SR}
        s_lshl_b32 s{S_T0}, s{S_WAVE}, 12
        v_add_u32 v{V_SR}, s{S_T0}, v{V_SR}
        """)
        srd_from(a, R_S, P_W2, 1376 * 1024)

    def stage_dma(vm, p):
        j, ct = divmod(p, 2)
        kind, off = piece_lds(p)
        if kind == 0:
            a(f"s_lshl_b32 s{S_T0}, s{S_WAVE}, 12")
        else:
            a(f"s_mul_i32 s{S_T0}, s{S_WAVE}, 3072")
        a(f"s_add_u32 m0, s{S_T0}, {off}")
        a(f"s_lshl_b32 s{S_T0}, s{S_C}, 6")
        if ct:
            a(f"s_sub_u32 s{S_T0}, 960, s{S_T0}")
        a(f"s_add_u32 s{S_T0}, s{S_T0}, s{S_WB}")
        if j:
            a(f"s_add_u32 s{S_T0}, s{S_T0}, {j*16384}")
        vm.issue(f"buffer_load_dwordx4 v{V_S}, s[{R_S}:{R_S+3}], s{S_T0} offen lds", ('w', p))

    def stage_read(lg, p):
        kind, off = piece_lds(p)
        d = A_W2 + 4 * p
        vr = V_SR if kind == 0 else V_SP
        if off >= 65536:
            a(f"v_add_u32 v0, {off}, v{vr}")
            vr, off = 0, 0
        lg.issue(f"ds_read_b64_tr_b16 a[{d}:{d+1}], v{vr} offset:{off}", ('w', p))
        lg.issue(f"ds_read_b64_tr_b16 a[{d+2}:{d+3}], v{vr} offset:{off+256}", ('w', p))

    def p2_preloads(vm):
        t = V_T
        a(f"""
        s_mov_b32 s{R_R+2}, {2048*4096}
        s_mov_b32 s{R_R+3}, 0x20000
        """)
        a(f"""
        s_lshl_b32 s{S_T1}, s{S_WAVE}, 2
        v_lshrrev_b32 v{t}, 4, v1
        v_add_u32 v{t}, s{S_T1}, v{t}
        """)
        beta_to_s(a, t + 1, t, t + 2)
        a(f"""
        v_and_b32 v{t+2}, 1, v{t}
        v_lshlrev_b32 v{t+2}, 1, v{t+2}             ; i tile0
        """)
        vrow(a, t + 3, t + 1, t + 2, t + 4, t + 5)
        a(f"v_sub_u32 v{t+2}, 3, v{t+2}")
        vrow(a, t + 6, t + 1, t + 2, t + 4, t + 5)
        a(f"""
        s_lshl_b32 s{S_T0}, s{S_C}, 6
        s_sub_u32 s{S_T1}, {960-64}, s{S_T0}
        v_and_b32 v{t+4}, 15, v1
        v_cmp_gt_u32 vcc, 8, v{t+4}
        v_mov_b32 v{t+5}, s{S_T1}
        v_mov_b32 v{t+7}, s{S_T0}
        v_cndmask_b32 v{t+5}, v{t+5}, v{t+7}, vcc
        v_lshl_add_u32 v{t+5}, v{t+4}, 3, v{t+5}
        v_lshl_add_u32 v{V_W0}, v{t+3}, 10, v{t+5}
        v_lshl_add_u32 v{V_W1}, v{t+6}, 10, v{t+5}
        v_lshlrev_b32 v{t+3}, 12, v{t+3}
        s_cmp_eq_u32 s{S_KIND}, 1
        s_cselect_b32 s{R_R}, s{P_WSI}, s{P_WSR}
        s_cselect_b32 s{R_R+1}, s{P_WSI+1}, s{P_WSR+1}
        s_and_b32 s{R_R+1}, s{R_R+1}, 0xffff
        """)
        vm.issue(f"buffer_load_dwordx2 a[{A_XT}:{A_XT+1}], v{V_W0}, s[{R_X}:{R_X+3}], 0 offen", 'c')
        vm.issue(f"buffer_load_dwordx2 a[{A_XT+2}:{A_XT+3}], v{V_W1}, s[{R_X}:{R_X+3}], 0 offen", 'c')
        vm.issue(f"buffer_load_ushort a{A_CB}, v{t+3}, s[{R_R}:{R_R+3}], 0 offen offset:1024", 'c')
        srd_from(a, R_B, P_B2, 1024)
        vm.issue(f"buffer_load_dwordx2 a[{A_B2}:{A_B2+1}], v{t+5}, s[{R_B}:{R_B+3}], 0 offen", 'c')

    def emit_stats(vm):
        vm.wait('row')
        f = list(range(V_T, V_T + 8))
        for i in range(4):
            a(f"v_lshlrev_b32 v{f[2*i]}, 16, v{V_ROW+i}")
            a(f"v_and_b32 v{f[2*i+1]}, 0xffff0000, v{V_ROW+i}")
        b = V_T + 8
        ln_stats(a, f, b, b + 1, b + 2, b + 3, b + 4, b + 5, True)
        ln_stats(a, f, b, b + 1, b + 6, b + 3, b + 4, b + 7, False)
        a(f"""
        v_mul_f32 v{b+8}, v{b+2}, v{b+5}            ; beta = m*r1
        v_mul_f32 v{b+9}, v{b+5}, v{b+7}            ; alpha' = r1*r2
        v_add_f32 v{b+10}, v{b+8}, v{b+6}
        v_mul_f32 v{b+10}, v{b+10}, v{b+7}          ; beta'
        v_cmp_eq_u32 vcc, 0, v1
        s_nop 1
        v_cndmask_b32 v{b+9}, v{b+9}, v{b+5}, vcc
        v_cndmask_b32 v{b+10}, v{b+10}, v{b+8}, vcc
        v_accvgpr_write_b32 a{A_ST}, v{b+9}
        v_accvgpr_write_b32 a{A_ST+2}, v{b+10}
        """)

    def phase1(dft):
        vm = Fifo(a, "vmcnt", 63)
        vm.q.append('row')
        if not dft:
            a(f"s_movk_i32 s{S_T1}, 5462")
            for i in range(2):
                a(f"""
                s_lshl_b32 s{S_T0}, s{S_WAVE}, 7
                s_add_u32 s{S_T0}, s{S_T0}, {64*i}
                v_add_u32 v{V_T+1}, s{S_T0}, v1             ; q
                v_mul_lo_u32 v{V_T+2}, v{V_T+1}, s{S_T1}
                v_lshrrev_b32 v{V_T+2}, 16, v{V_T+2}        ; row
                v_mul_u32_u24 v{V_T+3}, 12, v{V_T+2}
                v_sub_u32 v{V_T+3}, v{V_T+1}, v{V_T+3}      ; c
                v_mul_u32_u24 v{V_T+2}, 2752, v{V_T+2}
                v_lshl_add_u32 v{V_W0+i}, v{V_T+3}, 4, v{V_T+2}
                """)
            a(f"""
            v_subrev_u32 v{V_W1}, 1024, v{V_W1}
            s_lshl_b32 s{S_T0}, s{S_F0}, 6
            s_add_u32 s{R_B}, s{P_W1}, s{S_T0}
            s_addc_u32 s{R_B+1}, s{P_W1+1}, 0
            s_and_b32 s{R_B+1}, s{R_B+1}, 0xffff
            s_sub_u32 s{R_B+2}, {512*2752}, s{S_T0}
            s_mov_b32 s{R_B+3}, 0x20000
            s_mov_b32 s{S_BST}, {64*2752}
            s_mov_b32 s{S_BO}, 0
            s_lshl_b32 s{S_MB}, s{S_WAVE}, 11
            s_add_u32 s{S_MB}, s{S_MB}, {L_W1}
            """)
        else:
            a(f"""
            s_cmp_ge_u32 s{S_G}, 8
            s_cselect_b32 s{R_B}, s{P_WDI}, s{P_WDR}
            s_cselect_b32 s{R_B+1}, s{P_WDI+1}, s{P_WDR+1}
            s_and_b32 s{R_B+1}, s{R_B+1}, 0xffff
            s_mov_b32 s{R_B+2}, {512*1024}
            s_mov_b32 s{R_B+3}, 0x20000
            s_lshl_b32 s{S_BO}, s{S_C}, 15
            s_mov_b32 s{S_BST}, 128
            s_lshl_b32 s{S_MB}, s{S_RH}, 11
            s_add_u32 s{S_MB}, s{S_MB}, {L_WD}
            s_lshl_b32 s{S_T0}, s{S_RH}, 4
            v_lshrrev_b32 v{V_T+1}, 3, v1
            v_add_u32 v{V_T+1}, s{S_T0}, v{V_T+1}
            v_lshl_add_u32 v{V_W0}, v{V_T+1}, 10, v{V_T+6}
            v_lshl_add_u32 v{V_W1}, v{V_T+1}, 10, v{V_T+7}
            v_add_u32 v{V_W1}, {8192-1024}, v{V_W1}
            v_add_u32 v{V_SP}, {256*1024}, v{V_T+6}
            s_lshl_b32 s{S_T0}, s{S_RH}, 4
            s_add_u32 s{S_T0}, s{S_T0}, s{S_G}
            s_cmp_eq_u32 s{S_T0}, 8
            s_cselect_b32 s{S_MBm}, 0xff, 0
            s_mov_b32 s{S_MBm+1}, 0
            s_not_b32 s{S_MA}, s{S_MBm}
            s_mov_b32 s{S_MA+1}, -1
            """)
            srd_from(a, R_R, P_WDR, 512 * 1024)
        for g in range(4):
            ring_dma(vm, g, dft)
        a(f"v_mov_b32 v{V_T+1}, 0")
        vm.issue(f"buffer_load_dword v0, v{V_T+1}, s[{R_C}:{R_C+3}], 0 offen {SC}", 'tag')
        if not dft:
            srd_from(a, R_R, P_B1, 2752)
            a(f"""
            v_lshrrev_b32 v{V_T+1}, 5, v1
            v_lshlrev_b32 v{V_T+1}, 3, v{V_T+1}
            s_add_u32 s{S_T0}, s{S_F0}, s{S_U}
            s_lshl_b32 s{S_T0}, s{S_T0}, 6
            """)
            for g in range(4):
                d = A_B1 + 2 * g
                vm.issue(f"buffer_load_dwordx2 a[{d}:{d+1}], v{V_T+1}, s[{R_R}:{R_R+3}], s{S_T0} offen offset:{16*g}", 'b1')
        a(f"""
        v_and_b32 v{V_T+1}, 31, v1
        v_bfe_u32 v{V_T+2}, v1, 1, 3
        v_lshrrev_b32 v{V_T+3}, 5, v1
        v_xor_b32 v{V_T+2}, v{V_T+2}, v{V_T+3}
        v_lshlrev_b32 v{V_T+1}, 7, v{V_T+1}
        v_lshl_add_u32 v{V_T+1}, v{V_T+2}, 4, v{V_T+1}     ; pat_0
        s_lshl_b32 s{S_T0}, s{S_RH}, 13
        v_add_u32 v{V_RA}, s{S_T0}, v{V_T+1}
        """)
        for kk in range(1, 4):
            a(f"v_xor_b32 v{V_RA+kk}, {32*kk}, v{V_RA}")
        if dft:
            a(f"v_add_u32 v{V_RW}, {L_WD}, v{V_T+1}")
            for kk in range(1, 4):
                a(f"v_xor_b32 v{V_RW+kk}, {32*kk}, v{V_RW}")
        else:
            a(f"""
            v_lshlrev_b32 v{V_T+1}, 3, v{V_T+3}
            v_bfe_u32 v{V_T+2}, v1, 2, 2
            v_add_u32 v{V_T+1}, v{V_T+1}, v{V_T+2}
            v_mul_u32_u24 v{V_T+1}, 192, v{V_T+1}
            v_bfe_u32 v{V_T+2}, v1, 4, 1
            v_lshl_add_u32 v{V_T+1}, v{V_T+2}, 5, v{V_T+1}
            v_and_b32 v{V_T+2}, 3, v1
            v_lshl_add_u32 v{V_T+1}, v{V_T+2}, 3, v{V_T+1}
            s_lshl_b32 s{S_T0}, s{S_U}, 6
            s_add_u32 s{S_T0}, s{S_T0}, {L_W1}
            v_add_u32 v{V_RW}, s{S_T0}, v{V_T+1}
            v_add_u32 v{V_RW+1}, {2*SLOT}, v{V_RW}
            """)
        a(f"v_mov_b32 v{V_CS}, 0")
        if OPT['statpos'] == 0:
            emit_stats(vm)
        lg = Fifo(a, "lgkmcnt", 15)

        PD = OPT['pd']

        def fbase(n):
            m = n % (PD + 1)
            return V_FR + m * 12 if m < 2 else V_F3 + (m - 2) * 12

        def read_list(n):
            g, kk = divmod(n, 4)
            sl = g % 4
            base = fbase(n)
            L = []
            so = (sl % 2) * SLOT
            for T in range(2):
                L.append((f"ds_read_b128 v[{base+4*T}:{base+4*T+3}], v{V_RA+kk} offset:{so + 4096*T}", ('A', n, T)))
            b = base + 8
            if dft:
                L.insert(1, (f"ds_read_b128 v[{b}:{b+3}], v{V_RW+kk} offset:{so}", ('B', n)))
            else:
                o = so + kk * 3072
                vr = V_RW + (sl // 2)
                L.insert(1, (f"ds_read_b64_tr_b16 v[{b}:{b+1}], v{vr} offset:{o}", ('B', n)))
                L.insert(2, (f"ds_read_b64_tr_b16 v[{b+2}:{b+3}], v{vr} offset:{o+768}", ('B', n)))
            return L

        def flip_addr():
            for kk in range(4):
                a(f"v_xor_b32 v{V_RA+kk}, {2*SLOT}, v{V_RA+kk}")
            if dft:
                for kk in range(4):
                    a(f"v_xor_b32 v{V_RW+kk}, {2*SLOT}, v{V_RW+kk}")

        def mfma(n, T):
            lg.wait([('A', n, T), ('B', n)])
            base = fbase(n)
            acc = f"v[{V_ACC+16*T}:{V_ACC+16*T+15}]"
            act = f"v[{base+4*T}:{base+4*T+3}]"
            wgt = f"v[{base+8}:{base+11}]"
            c = "0" if n == 0 else acc
            if dft:
                a(f"v_mfma_f32_32x32x16_bf16 {acc}, {act}, {wgt}, {c}")
            else:
                a(f"v_mfma_f32_32x32x16_bf16 {acc}, {wgt}, {act}, {c}")

        vm.wait(('t', 0))
        a("s_barrier")
        stamp(a, "L0")
        for n0 in range(PD):
            for it in read_list(n0):
                lg.issue(*it)
        for n in range(32):
            g, kk = divmod(n, 4)
            if kk == 2:
                if g == 2:
                    vm.wait([('t', 3), 'tag'])
                    a(f"v_readfirstlane_b32 s{S_TAG}, v0")
                elif g < 7:
                    vm.wait(('t', g + 1))
                a("s_barrier")
                if OPT.get('dbg') == 1:
                    stamp(a, f"g{g}")
                if 1 <= g <= 4:
                    ring_dma(vm, g + 3, dft)
                if g == 0 and OPT['statpos'] == 1:
                    emit_stats(vm)
                if g == 2:
                    ok = a.newlabel("Ltagok")
                    lp = a.newlabel("Ltagp")
                    a(f"s_mov_b32 s{S_T1}, 400000")
                    a.label(lp)
                    a(f"""
                    s_cmp_lg_u32 s{S_TAG}, 0
                    s_cbranch_scc1 {ok}
                    v_mov_b32 v0, 0
                    buffer_load_dword v0, v0, s[{R_C}:{R_C+3}], 0 offen {SC}
                    s_waitcnt vmcnt(0)
                    v_readfirstlane_b32 s{S_TAG}, v0
                    s_sub_u32 s{S_T1}, s{S_T1}, 1
                    s_cmp_lg_u32 s{S_T1}, 0
                    s_cbranch_scc1 {lp}
                    """)
                    a.label(ok)
                    a(f"""
                    v_accvgpr_write_b32 a{A_ST+1}, s{S_TAG}
                    v_accvgpr_write_b32 a{A_ST+3}, s{S_TAG}
                    v_lshlrev_b32 v0, 4, v1
                    s_lshl_b32 s{S_T0}, s{S_SROW}, 5
                    s_add_u32 s{S_T0}, s{S_T0}, {WS_STAT}
                    s_mov_b64 exec, 3
                    """)
                    vm.issue(f"buffer_store_dwordx4 a[{A_ST}:{A_ST+3}], v0, s[{R_WS}:{R_WS+3}], s{S_T0} offen {SP}", 'st')
                    a("s_mov_b64 exec, -1")
                if g == 5:
                    stage_setup()
                    for p in (0, 1, 2, 3, 12, 13, 14):
                        stage_dma(vm, p)
                    p2_preloads(vm)
                if g == 6:
                    a(f"""
                    s_lshl_b32 s{S_T0}, s{S_R}, 12
                    s_lshl_b32 s{S_T1}, s{S_RH}, 11
                    s_add_u32 s{S_T0}, s{S_T0}, s{S_T1}
                    s_add_u32 s{S_REC}, s{S_T0}, {WS_STAT}
                    """)
                    if dft:
                        a(f"v_lshlrev_b32 v{V_ROW}, 5, v1")
                        vm.issue(f"buffer_load_dwordx4 a[{A_REC}:{A_REC+3}], v{V_ROW}, s[{R_WS}:{R_WS+3}], s{S_REC} offen {SP}", 'rec')
                    else:
                        a(f"v_and_b32 v{V_ROW}, 31, v1")
                        a(f"v_lshlrev_b32 v{V_ROW}, 5, v{V_ROW}")
                        vm.issue(f"buffer_load_dwordx4 a[{A_REC}:{A_REC+3}], v{V_ROW}, s[{R_WS}:{R_WS+3}], s{S_REC} offen offset:16 {SP}", 'rec')
                        vm.issue(f"buffer_load_dwordx4 a[{A_REC+4}:{A_REC+7}], v{V_ROW}, s[{R_WS}:{R_WS+3}], s{S_REC} offen offset:1040 {SP}", 'rec')
                    for p in (4, 5, 6, 7):
                        stage_dma(vm, p)
                if g == 7:
                    for p in (8, 9, 10, 11):
                        stage_dma(vm, p)
            if n + PD < 32 and (n + PD) % 8 == 0:
                flip_addr()
            R = read_list(n + PD) if n + PD < 32 else []
            per = (len(R) + 1) // 2
            base = fbase(n)
            for T in range(2):
                mfma(n, T)
                for it in R[T * per:(T + 1) * per]:
                    lg.issue(*it)
                for j in range(2):
                    a(f"v_dot2_f32_bf16 v{V_CS}, v{base+8+2*T+j}, s{S_ONES}, v{V_CS}")
        stamp(a, "p1 loop done")
        return vm, lg

    K0c = -2.0 * math.log2(math.e) * 0.7978845608028654
    K1c = K0c * 0.044715

    def rec_check(vm, nrec, offs):
        vm.wait('rec')
        ok = a.newlabel("Lrecok")
        lp = a.newlabel("Lrecp")
        a(f"s_mov_b32 s{S_T2}, 400000")
        a.label(lp)
        for i in range(4 * nrec):
            a(f"v_accvgpr_read_b32 v{V_FR+i}, a{A_REC+i}")
        t = V_FR + 8
        a(f"v_xor_b32 v{t}, s{S_TAG}, v{V_FR+1}")
        a(f"v_xor_b32 v{t+1}, s{S_TAG}, v{V_FR+3}")
        a(f"v_or_b32 v{t}, v{t}, v{t+1}")
        if nrec == 2:
            a(f"v_xor_b32 v{t+1}, s{S_TAG}, v{V_FR+5}")
            a(f"v_xor_b32 v{t+2}, s{S_TAG}, v{V_FR+7}")
            a(f"v_or3_b32 v{t}, v{t}, v{t+1}, v{t+2}")
        a(f"""
        v_cmp_ne_u32 vcc, 0, v{t}
        s_nop 4
        s_cbranch_vccz {ok}
        """)
        for i in range(nrec):
            a(f"buffer_load_dwordx4 a[{A_REC+4*i}:{A_REC+4*i+3}], v{V_ROW}, s[{R_WS}:{R_WS+3}], s{S_REC} offen offset:{offs[i]} {SP}")
        a(f"""
        s_waitcnt vmcnt(0)
        s_sub_u32 s{S_T2}, s{S_T2}, 1
        s_cmp_lg_u32 s{S_T2}, 0
        s_cbranch_scc1 {lp}
        """)
        a.label(ok)
        stamp2(a, "stats ok")

    def epilogue_mlp(vm, lg):
        V_E, V_CA, V_K0 = V_RA, V_RA + 1, V_RA + 2
        AL = [V_RW, V_RW + 2]
        BE = [V_RW + 1, V_RW + 3]
        a("s_nop 2")
        half_sum(a, V_CS, V_T)
        a(f"""
        s_lshl_b32 s{S_T0}, s{S_WAVE}, 10
        s_add_u32 s{S_T0}, s{S_T0}, {L_MISC}
        v_and_b32 v{V_T}, 31, v1
        v_lshl_add_u32 v{V_T+1}, v{V_T}, 2, s{S_T0}
        ds_write_b32 v{V_T+1}, v{V_CS}
        v_lshrrev_b32 v{V_T+2}, 5, v1
        v_lshl_add_u32 v{V_CA}, v{V_T+2}, 4, s{S_T0}
        v_bfe_u32 v{V_T+3}, v{V_T}, 3, 1            ; kind'
        v_mul_u32_u24 v{V_E}, {H_RK}, v{V_T+3}
        v_and_b32 v{V_T+3}, 1, v{V_T}               ; tile2
        v_lshl_add_u32 v{V_E}, v{V_T+3}, 10, v{V_E}
        v_lshl_add_u32 v{V_E}, v{V_T+2}, 9, v{V_E}
        v_bfe_u32 v{V_T+4}, v{V_T}, 1, 1
        v_xor_b32 v{V_T+3}, v{V_T+3}, v{V_T+4}      ; j
        v_lshl_add_u32 v{V_E}, v{V_T+3}, 4, v{V_E}
        v_bfe_u32 v{V_T+3}, v{V_T}, 4, 1            ; gh
        v_lshl_add_u32 v{V_E}, v{V_T+3}, 5, v{V_E}
        v_bfe_u32 v{V_T+3}, v{V_T}, 2, 1            ; hf'
        v_lshl_add_u32 v{V_E}, v{V_T+3}, 6, v{V_E}
        v_mov_b32 v{V_K0}, {f32hex(K0c)}
        s_mov_b32 s{S_K1}, {f32hex(K1c)}
        s_add_u32 s{S_T0}, s{S_F0}, s{S_U}
        s_lshl_b32 s{S_T0}, s{S_T0}, 12
        s_mul_i32 s{S_T1}, s{S_R}, {2*H_RK}
        s_add_u32 s{S_T0}, s{S_T0}, s{S_T1}
        s_lshl_b32 s{S_T1}, s{S_RH}, 8
        s_add_u32 s{S_T0}, s{S_T0}, s{S_T1}
        s_add_u32 s{S_U1}, s{S_T0}, {WS_H}
        s_cmp_ge_u32 s{S_G}, 11
        s_cselect_b32 s{S_T0}, 2, 9
        s_cmp_eq_u32 s{S_U}, s{S_T0}
        s_cselect_b32 s{S_U1}, {WS_DUMMY}, s{S_U1}
        """)
        rec_check(vm, 2, [16, 1040])
        a(f"""
        v_mov_b32 v{AL[0]}, v{V_FR}
        v_mov_b32 v{BE[0]}, v{V_FR+2}
        v_mov_b32 v{AL[1]}, v{V_FR+4}
        v_mov_b32 v{BE[1]}, v{V_FR+6}
        """)
        vm.wait('b1')
        a("s_waitcnt lgkmcnt(0)")
        for gp in range(2):
            c = [V_FR + i for i in range(8)]
            b = [V_FR + 8 + i for i in range(8)]
            bb = [V_FR + 16 + i for i in range(8)]
            e = [V_T + i for i in range(8)]
            a(f"ds_read_b128 v[{c[0]}:{c[3]}], v{V_CA} offset:{64*gp}")
            a(f"ds_read_b128 v[{c[4]}:{c[7]}], v{V_CA} offset:{64*gp + 32}")
            for i in range(4):
                a(f"v_accvgpr_read_b32 v{e[i]}, a{A_B1 + 4*gp + i}")
            for i in range(4):
                a(f"v_lshlrev_b32 v{b[2*i]}, 16, v{e[i]}")
                a(f"v_and_b32 v{b[2*i+1]}, 0xffff0000, v{e[i]}")
            a("s_waitcnt lgkmcnt(0)")
            for T in range(2):
                pk = V_T + 8 + 4 * T
                x = [V_ACC + 16 * T + 8 * gp + i for i in range(8)]
                for i in range(8):
                    a(f"v_fma_f32 v{bb[i]}, -v{BE[T]}, v{c[i]}, v{b[i]}")
                for i in range(8):
                    a(f"v_fma_f32 v{x[i]}, v{AL[T]}, v{x[i]}, v{bb[i]}")
                for i in range(8):
                    a(f"v_mul_f32 v{e[i]}, v{x[i]}, v{x[i]}")
                for i in range(8):
                    a(f"v_fma_f32 v{e[i]}, v{e[i]}, s{S_K1}, v{V_K0}")
                for i in range(8):
                    a(f"v_mul_f32 v{e[i]}, v{e[i]}, v{x[i]}")
                for i in range(8):
                    a(f"v_exp_f32 v{e[i]}, v{e[i]}")
                for i in range(8):
                    a(f"v_add_f32 v{e[i]}, 1.0, v{e[i]}")
                for i in range(8):
                    a(f"v_rcp_f32 v{e[i]}, v{e[i]}")
                for i in range(8):
                    a(f"v_mul_f32 v{x[i]}, v{x[i]}, v{e[i]}")
                for i in range(4):
                    a(f"v_cvt_pk_bf16_f32 v{pk+i}, v{x[2*i]}, v{x[2*i+1]}")
                a("s_nop 1")
                a(f"v_permlane32_swap_b32 v{pk}, v{pk+2}")
                a(f"v_permlane32_swap_b32 v{pk+1}, v{pk+3}")
                a("s_nop 0")
                vm.issue(f"buffer_store_dwordx4 v[{pk}:{pk+3}], v{V_E}, s[{R_WS}:{R_WS+3}], s{S_U1} offen offset:{2048*gp + 128*T} {SP}", 'out')

    def epilogue_dft(vm, lg):
        V_E, V_SG, V_AD = V_RA, V_RA + 1, V_RA + 2
        a("s_nop 2")
        half_sum(a, V_CS, V_T)
        a(f"""
        v_and_b32 v{V_T}, 31, v1
        v_lshrrev_b32 v{V_T+2}, 5, v1
        s_mul_i32 s{S_T0}, s{S_KIND}, {AB_PART}     ; part = G>>3
        s_lshl_b32 s{S_T1}, s{S_C}, 9
        s_add_u32 s{S_T0}, s{S_T0}, s{S_T1}
        v_lshl_add_u32 v{V_E}, v{V_T}, 4, s{S_T0}
        s_cmp_ge_u32 s{S_G}, 8
        s_cselect_b32 s{S_T1}, -1.0, 1.0
        v_mov_b32 v{V_SG}, s{S_T1}
        s_cmp_eq_u32 s{S_G}, 8
        s_cselect_b32 s{S_T1}, 0, 99
        v_cmp_eq_u32 vcc, s{S_T1}, v{V_T}
        v_mov_b32 v{V_T+3}, 4096
        v_mov_b32 v{V_T+4}, 1.0
        v_cndmask_b32 v{V_E}, v{V_E}, v{V_T+3}, vcc
        v_cndmask_b32 v{V_SG}, v{V_SG}, v{V_T+4}, vcc
        s_nop 1
        s_mov_b64 s[{S_MA}:{S_MA+1}], vcc
        v_mul_u32_u24 v{V_T+3}, {AB_KP}, v{V_T+2}
        v_add_u32 v{V_RW}, v{V_E}, v{V_T+3}
        v_add_u32 v{V_RW+1}, {AB_PART}, v{V_T+3}
        s_lshl_b32 s{S_T0}, s{S_R}, 2
        s_lshl_b32 s{S_T1}, s{S_RH}, 1
        s_add_u32 s{S_T0}, s{S_T0}, s{S_T1}
        s_mul_i32 s{S_T0}, s{S_T0}, {AB_KP}
        s_add_u32 s{S_U1}, s{S_T0}, {WS_AB}         ; class E
        s_add_u32 s{S_K1}, s{S_U1}, {2*AB_PART}     ; class O
        s_lshl_b32 s{S_T0}, s{S_WAVE}, 10
        s_add_u32 s{S_T0}, s{S_T0}, {L_MISC}
        v_lshl_add_u32 v{V_T+1}, v1, 2, s{S_T0}
        v_lshl_add_u32 v{V_AD}, v{V_T+2}, 4, s{S_T0}
        """)
        rec_check(vm, 1, [0])
        a(f"""
        ds_write_b32 v{V_T+1}, v{V_FR}
        ds_write_b32 v{V_T+1}, v{V_FR+2} offset:256
        s_waitcnt lgkmcnt(0)
        """)
        OE = V_T + 4
        for T in range(2):
            al = [V_FR + i for i in range(16)]
            be = [V_ROW - 8 + i for i in range(8)]
            for g in range(4):
                a(f"ds_read_b128 v[{al[4*g]}:{al[4*g+3]}], v{V_AD} offset:{128*T + 32*g}")
            for gh in range(2):
                for g2 in range(2):
                    g = 2 * gh + g2
                    a(f"ds_read_b128 v[{be[4*g2]}:{be[4*g2+3]}], v{V_AD} offset:{256 + 128*T + 32*g}")
                a("s_waitcnt lgkmcnt(0)")
                x = [V_ACC + 16 * T + 8 * gh + i for i in range(8)]
                for i in range(8):
                    a(f"v_mul_f32 v{be[i]}, v{be[i]}, v{V_CS}")
                for i in range(8):
                    a(f"v_fma_f32 v{x[i]}, v{al[8*gh+i]}, v{x[i]}, -v{be[i]}")
                for g2 in range(2):
                    g = 2 * gh + g2
                    z = x[4 * g2:4 * g2 + 4]
                    t = be
                    o, e = OE + 4 * T + g, OE + 8 + 4 * T + g
                    a(f"""
                    v_sub_f32 v{t[0]}, v{z[0]}, v{z[1]}
                    v_add_f32 v{t[1]}, v{z[0]}, v{z[1]}
                    v_sub_f32 v{t[2]}, v{z[3]}, v{z[2]}
                    v_add_f32 v{t[3]}, v{z[3]}, v{z[2]}
                    v_fma_f32 v{o}, v{V_SG}, v{t[2]}, v{t[0]}
                    v_fma_f32 v{e}, v{V_SG}, v{t[3]}, v{t[1]}
                    """)
        sk = a.newlabel("Lspec")
        z = [V_ACC + i for i in range(4)]
        t = V_FR
        a(f"""
        s_or_b32 s{S_T0}, s{S_R}, s{S_RH}
        s_cmp_lg_u32 s{S_T0}, 0
        s_cbranch_scc1 {sk}
        s_mov_b64 exec, s[{S_LO}:{S_LO+1}]
        v_sub_f32 v{OE}, v{z[0]}, v{z[3]}
        v_add_f32 v{OE+8}, v{z[0]}, v{z[3]}
        v_fma_f32 v{t}, v{V_SG}, v{z[1]}, v{z[2]}
        s_lshl_b32 s{S_T0}, s{S_KIND}, 11
        s_lshl_b32 s{S_T1}, s{S_C}, 7
        s_add_u32 s{S_T0}, s{S_T0}, s{S_T1}
        v_lshl_add_u32 v{t+1}, v1, 2, s{S_T0}
        v_mov_b32 v{t+2}, 1024
        v_cndmask_b32 v{t+1}, v{t+1}, v{t+2}, s[{S_MA}:{S_MA+1}]
        s_mov_b32 s{S_T0}, {WS_V}
        buffer_store_dword v{t}, v{t+1}, s[{R_WS}:{R_WS+3}], s{S_T0} offen {SP}
        s_and_b64 exec, exec, s[{S_MA}:{S_MA+1}]
        v_mov_b32 v{t+3}, 0
        v_mov_b32 v{t+4}, 2048
        buffer_store_dword v{t+3}, v{t+4}, s[{R_WS}:{R_WS+3}], s{S_T0} offen {SP}
        buffer_store_dword v{t+3}, v{t+4}, s[{R_WS}:{R_WS+3}], s{S_T0} offen offset:1024 {SP}
        s_mov_b64 exec, -1
        """)
        a.label(sk)
        pk = V_FR + 8
        for i in range(8):
            a(f"v_cvt_pk_bf16_f32 v{pk+i}, v{OE+2*i}, v{OE+2*i+1}")
        vm.issue(f"buffer_store_dwordx4 v[{pk}:{pk+3}], v{V_RW}, s[{R_WS}:{R_WS+3}], s{S_K1} offen {SP}", 'out')
        vm.issue(f"buffer_store_dwordx4 v[{pk+4}:{pk+7}], v{V_RW}, s[{R_WS}:{R_WS+3}], s{S_U1} offen {SP}", 'out')
        sk = a.newlabel("Lzero")
        zz = V_FR + 16
        a(f"""
        s_cmp_lg_u32 s{S_G}, 8
        s_cbranch_scc1 {sk}
        v_mov_b32 v{zz}, 0
        v_mov_b32 v{zz+1}, 0
        v_mov_b32 v{zz+2}, 0
        v_mov_b32 v{zz+3}, 0
        v_add_u32 v{V_RW+2}, 4096, v{V_RW+1}
        s_mov_b64 exec, s[{S_MA}:{S_MA+1}]
        buffer_store_dwordx4 v[{zz}:{zz+3}], v{V_RW+1}, s[{R_WS}:{R_WS+3}], s{S_K1} offen {SP}
        buffer_store_dwordx4 v[{zz}:{zz+3}], v{V_RW+1}, s[{R_WS}:{R_WS+3}], s{S_U1} offen {SP}
        buffer_store_dwordx4 v[{zz}:{zz+3}], v{V_RW+2}, s[{R_WS}:{R_WS+3}], s{S_K1} offen {SP}
        buffer_store_dwordx4 v[{zz}:{zz+3}], v{V_RW+2}, s[{R_WS}:{R_WS+3}], s{S_U1} offen {SP}
        s_mov_b64 exec, -1
        """)
        a.label(sk)

    vm0, lg0 = phase1(False)
    epilogue_mlp(vm0, lg0)
    a("s_branch L_POST1")
    a.label("L_DFT1")
    vm1, lg1 = phase1(True)
    epilogue_dft(vm1, lg1)
    a.label("L_POST1")
    stamp(a, "stores issued")
    vm = Fifo(a, "vmcnt", 63)
    lg = Fifo(a, "lgkmcnt", 15)
    for p in range(0, 4):
        stage_read(lg, p)
    for p in (12, 13, 14):
        stage_read(lg, p)
    lg.drain()
    for p in (15, 16, 17, 18):
        stage_dma(vm, p)
    a("s_waitcnt vmcnt(4)")
    a("s_barrier")
    sk = a.newlabel("Lflag")
    a(f"""
    s_cmp_lg_u32 s{S_WAVE}, 0
    s_cbranch_scc1 {sk}
    """)
    stamp(a, "epi1 done")
    a(f"""
    s_lshl_b32 s{S_T0}, s2, 2
    v_mov_b32 v{V_T}, s{S_T0}
    v_mov_b32 v{V_T+1}, s{S_TAG}
    s_mov_b64 exec, 1
    buffer_store_dword v{V_T+1}, v{V_T}, s[{R_WS}:{R_WS+3}], 0 offen offset:{WS_FLAG} {SC}
    s_mov_b64 exec, -1
    """)
    a.label(sk)
    cb, cs_, ct_ = V_ACC, V_ACC + 1, V_ACC + 2
    a(f"""
    v_lshrrev_b32 v{ct_}, 4, v1                 ; r
    v_and_b32 v{cb}, 15, v1
    v_xor_b32 v{cb}, v{cb}, v{ct_}
    v_lshlrev_b32 v{cb}, 4, v{cb}               ; (p ^ r)*16
    s_lshl_b32 s{S_T0}, s{S_R}, 5
    s_add_u32 s{S_T0}, s{S_T0}, s{S_KIND}
    v_and_b32 v{ct_+1}, 2, v{ct_}
    v_add_u32 v{ct_+1}, s{S_T0}, v{ct_+1}       ; s_lane
    v_and_b32 v{ct_}, 1, v{ct_}                 ; j
    v_cmp_eq_u32 vcc, 1, v{ct_}
    v_sub_u32 v{ct_+2}, 1024, v{ct_+1}
    v_mov_b32 v{cs_}, 4096
    v_mov_b32 v{ct_+3}, -4096
    v_cndmask_b32 v{ct_+2}, v{ct_+1}, v{ct_+2}, vcc     ; t_lane
    v_cndmask_b32 v{cs_}, v{cs_}, v{ct_+3}, vcc
    v_lshl_add_u32 v{cb}, v{ct_+2}, 12, v{cb}           ; base
    v_cmp_eq_u32 vcc, 1024, v{ct_+2}
    v_subrev_u32 v{ct_+3}, {512*4096}, v{cb}
    s_cmp_ge_u32 s{S_WAVE}, 4
    s_cselect_b32 s{R_R}, s{P_WSI}, s{P_WSR}
    s_cselect_b32 s{R_R+1}, s{P_WSI+1}, s{P_WSR+1}
    s_and_b32 s{R_R+1}, s{R_R+1}, 0xffff
    v_cndmask_b32 v{ct_+3}, v{cb}, v{ct_+3}, vcc
    s_and_b32 s{S_BO}, s{S_WAVE}, 3
    s_lshl_b32 s{S_BO}, s{S_BO}, 8
    s_lshl_b32 s{S_BST}, s{S_WAVE}, 12
    """)

    def c_dma(q):
        area = 3 * SLOT if q < 4 else 2 * SLOT
        a(f"s_add_u32 m0, s{S_BST}, {area + (q % 4) * 1024}")
        if q == 0:
            ad = ct_ + 3
            a("s_nop 0")
        else:
            dl = 16 * (q >> 2) + 8 * (q & 1) + 4 * ((q >> 1) & 1)
            ad = ct_ + 4
            a(f"v_mad_i32_i24 v{ad}, v{cs_}, {dl}, v{cb}")
            if q & 3:
                a(f"v_xor_b32 v{ad}, {64*(q&3)}, v{ad}")
        vm.issue(f"buffer_load_dwordx4 v{ad}, s[{R_R}:{R_R+3}], s{S_BO} offen lds", 'c')

    for q in range(4):
        c_dma(q)
    for p in range(4, 12):
        stage_read(lg, p)
    lg.drain()
    for p in (19, 20, 21):
        stage_dma(vm, p)
    for q in range(4, 8):
        c_dma(q)
    V_H, V_AB, V_EXR, V_PW, V_FA, V_TAU, V_VA = V_RA, V_RA + 1, V_RA + 2, V_RA + 3, V_RW, V_RW + 1, V_RW + 2
    V_PX = V_CS
    S_HB, S_ABB = S_MX, S_MB
    t = V_T
    a(f"""
    v_lshlrev_b32 v{V_H}, 4, v1
    s_lshl_b32 s{S_T0}, s{S_R}, 1
    s_add_u32 s{S_T0}, s{S_T0}, s{S_KIND}
    s_mul_i32 s{S_T0}, s{S_T0}, {H_RK}
    s_lshl_b32 s{S_T1}, s{S_KS0}, 11
    s_add_u32 s{S_T0}, s{S_T0}, s{S_T1}
    s_add_u32 s{S_HB}, s{S_T0}, {WS_H}
    s_lshl_b32 s{S_T0}, s{S_KIND}, 1
    s_lshr_b32 s{S_T1}, s{S_WAVE}, 2
    s_add_u32 s{S_T0}, s{S_T0}, s{S_T1}
    s_mul_i32 s{S_T0}, s{S_T0}, {AB_PART}
    s_and_b32 s{S_T1}, s{S_WAVE}, 3
    s_mul_i32 s{S_T1}, s{S_T1}, {16*AB_KP}
    s_add_u32 s{S_T0}, s{S_T0}, s{S_T1}
    s_lshl_b32 s{S_T1}, s{S_C}, 9
    s_add_u32 s{S_T0}, s{S_T0}, s{S_T1}
    s_add_u32 s{S_ABB}, s{S_T0}, {WS_AB}
    v_and_b32 v{t}, 31, v1
    v_lshrrev_b32 v{t+1}, 5, v1
    v_mul_u32_u24 v{V_AB}, {8*AB_KP}, v{t+1}
    v_lshl_add_u32 v{V_AB}, v{t}, 4, v{V_AB}
    v_and_b32 v{t+2}, 15, v1
    v_mul_u32_u24 v103, {AB_KP}, v{t+2}
    v_add_u32 v103, 512, v103
    s_lshl_b32 s{S_T0}, s{S_WAVE}, 10
    s_add_u32 s{S_U1}, s{S_T0}, {L_EX}
    v_lshl_add_u32 v{V_EXR}, v{t+1}, 7, s{S_U1}
    v_and_b32 v{t+4}, 7, v1
    v_xor_b32 v{t+4}, v{t+4}, v{t+1}
    v_lshlrev_b32 v{V_PW}, 8, v{t}
    v_lshl_add_u32 v{V_PW}, v{t+4}, 4, v{V_PW}
    s_lshl_b32 s{S_T0}, s{S_WAVE}, 13
    v_add_u32 v{V_PW}, s{S_T0}, v{V_PW}
    s_lshl_b32 s{S_T0}, s{S_WAVE}, 2
    v_lshrrev_b32 v{t+4}, 4, v1
    v_add_u32 v{t+4}, s{S_T0}, v{t+4}
    v_and_b32 v{t+5}, 7, v{t+4}
    v_xor_b32 v{t+5}, v{t+5}, v{t+2}
    v_lshlrev_b32 v{V_FA}, 8, v{t+4}
    v_lshl_add_u32 v{V_FA}, v{t+5}, 4, v{V_FA}
    v_cmp_gt_u32 vcc, 8, v{t+2}
    v_mov_b32 v{t+4}, -1.0
    v_mov_b32 v{t+5}, 1.0
    v_cndmask_b32 v{V_TAU}, v{t+4}, v{t+5}, vcc
    s_lshl_b32 s{S_T0}, s{S_KIND}, 11
    s_lshl_b32 s{S_T1}, s{S_C}, 7
    s_add_u32 s{S_T0}, s{S_T0}, s{S_T1}
    v_lshlrev_b32 v{t+4}, 4, v{t+2}
    v_sub_u32 v{t+5}, 256, v{t+4}
    v_cndmask_b32 v{t+4}, v{t+5}, v{t+4}, vcc
    v_add_u32 v{V_VA}, s{S_T0}, v{t+4}
    v_mov_b32 v{t+4}, -4
    v_mov_b32 v{t+5}, 4
    v_cndmask_b32 v{V_VA+1}, v{t+4}, v{t+5}, vcc    ; stride
    v_mov_b32 v{V_PX}, 0
    """)
    vm.wait([('w', p) for p in (15, 16, 17, 18)])
    for p in (15, 16, 17, 18):
        stage_read(lg, p)
    vm.wait([('w', p) for p in (19, 20, 21)])
    for p in (19, 20, 21):
        stage_read(lg, p)
    a(f"""
    v_and_b32 v{cb}, 15, v1
    v_lshrrev_b32 v{cs_}, 5, v1
    v_lshlrev_b32 v{cs_}, 3, v{cs_}
    v_xor_b32 v{cs_}, v{cs_}, v{cb}
    v_lshlrev_b32 v{cb}, 8, v{cb}
    v_lshl_add_u32 v{cb}, v{cs_}, 4, v{cb}
    v_bfe_u32 v{cs_}, v1, 4, 1
    v_lshlrev_b32 v{cs_}, 15, v{cs_}
    v_sub_u32 v{cb}, v{cb}, v{cs_}
    s_add_u32 s{S_T0}, s{S_BST}, {3*SLOT}
    v_add_u32 v{cb}, s{S_T0}, v{cb}
    """)
    vm.drain()
    for k in range(8):
        if k:
            a(f"v_xor_b32 v{cs_}, {16*k}, v{cb}")
        lg.issue(f"ds_read_b128 v[{V_C+4*k}:{V_C+4*k+3}], v{cs_ if k else cb}", 'c')
    lg.drain()
    sk = a.newlabel("Lz11")
    a(f"""
    s_cmp_lt_u32 s{S_WAVE}, 6
    s_cbranch_scc1 {sk}
    """)
    for i in range(8):
        a(f"v_accvgpr_write_b32 a{A_W2+80+i}, 0")
    a.label(sk)
    sk = a.newlabel("Lsync")
    lp = a.newlabel("Lpoll")
    dn = a.newlabel("Lpdone")
    a(f"""
    s_cmp_lg_u32 s{S_WAVE}, 0
    s_cbranch_scc1 {sk}
    """)
    stamp2(a, "staged")
    a(f"s_mov_b32 s{S_T1}, 400000")
    a.label(lp)
    q = V_ACC
    a(f"""
    buffer_load_dwordx4 v[{q}:{q+3}], v{V_H}, s[{R_WS}:{R_WS+3}], 0 offen offset:{WS_FLAG} {SC}
    s_waitcnt vmcnt(0)
    v_xor_b32 v{q}, s{S_TAG}, v{q}
    v_xor_b32 v{q+1}, s{S_TAG}, v{q+1}
    v_xor_b32 v{q+2}, s{S_TAG}, v{q+2}
    v_xor_b32 v{q+3}, s{S_TAG}, v{q+3}
    v_or_b32 v{q}, v{q}, v{q+1}
    v_or3_b32 v{q}, v{q}, v{q+2}, v{q+3}
    v_cmp_ne_u32 vcc, 0, v{q}
    s_nop 4
    s_cbranch_vccz {dn}
    s_sub_u32 s{S_T1}, s{S_T1}, 1
    s_cmp_lg_u32 s{S_T1}, 0
    s_cbranch_scc1 {lp}
    """)
    a.label(dn)
    stamp(a, "S2 done")
    a.label(sk)
    a("s_barrier")
    V_D = 48
    V_ABF = 64
    V_XT = 96
    V_WIN = 104
    V_V = 0
    VV = [V_X0, V_X1, V_SP, 0]

    def hreg(phi):
        if phi < 17:
            return V_WIN + 4 * (phi % 6)
        return V_C + 4 * (phi - 17)

    def hload(phi):
        tile, ks = divmod(phi, 11)
        r = hreg(phi)
        o = ks * 2048 + tile * 1024
        if o < 4096:
            vm.issue(f"buffer_load_dwordx4 v[{r}:{r+3}], v{V_H}, s[{R_WS}:{R_WS+3}], s{S_HB} offen offset:{o}", ('h', phi))
        else:
            if ks == 10:
                a(f"s_cmp_lt_u32 s{S_WAVE}, 6")
                a(f"s_cselect_b32 s{S_T0}, 0, 2048")
                a(f"s_sub_u32 s{S_T0}, s{S_HB}, s{S_T0}")
                a(f"s_add_u32 s{S_T0}, s{S_T0}, {o}")
            else:
                a(f"s_add_u32 s{S_T0}, s{S_HB}, {o}")
            vm.issue(f"buffer_load_dwordx4 v[{r}:{r+3}], v{V_H}, s[{R_WS}:{R_WS+3}], s{S_T0} offen", ('h', phi))

    for phi in range(6):
        hload(phi)
    for k in range(8):
        r = V_ABF + 4 * k
        if k == 0:
            vm.issue(f"buffer_load_dwordx4 v[{r}:{r+3}], v{V_AB}, s[{R_WS}:{R_WS+3}], s{S_ABB} offen", 'ab')
        else:
            a(f"s_add_u32 s{S_T0}, s{S_ABB}, {k*AB_KP}")
            vm.issue(f"buffer_load_dwordx4 v[{r}:{r+3}], v{V_AB}, s[{R_WS}:{R_WS+3}], s{S_T0} offen", 'ab')
    a(f"s_mov_b32 m0, s{S_U1}")
    a(f"s_mov_b32 s{S_T0}, {WS_V}")
    vm.issue(f"buffer_load_dwordx4 v103, s[{R_WS}:{R_WS+3}], s{S_ABB} offen lds", 'ab')
    for i in range(4):
        vm.issue(f"buffer_load_dword v{VV[i]}, v{V_VA}, s[{R_WS}:{R_WS+3}], s{S_T0} offen", 'v')
        if i < 3:
            a(f"v_add_u32 v{V_VA}, v{V_VA}, v{V_VA+1}")

    def mlp_step(phi):
        tile, ks = divmod(phi, 11)
        vm.wait(('h', phi))
        r = hreg(phi)
        for ct in range(2):
            acc = f"a[{A_ACC+16*ct}:{A_ACC+16*ct+15}]"
            w = A_W2 + 8 * ks + 4 * ct
            c = "0" if ks == 0 else acc
            a(f"v_mfma_f32_32x32x16_bf16 {acc}, a[{w}:{w+3}], v[{r}:{r+3}], {c}")
        if phi + 6 < 17:
            hload(phi + 6)

    def mlp_flush(base):
        a("s_nop 7")
        a("s_nop 3")
        for ct in range(2):
            for g in range(4):
                x = 32 * g
                r = A_ACC + 16 * ct + 4 * g
                if g:
                    a(f"v_xor_b32 v{V_XT}, {x}, v{V_PW}")
                    ad = V_XT
                else:
                    ad = V_PW
                lg.issue(f"ds_write_b128 v{ad}, a[{r}:{r+3}] offset:{base + 128*ct}", 'pw')

    stamp2(a, "P2 issued")
    for phi in range(11):
        mlp_step(phi)
    a(f"v_add_u32 v{V_PW}, 65536, v{V_PW}")
    mlp_flush(0)
    a(f"v_subrev_u32 v{V_PW}, 65536, v{V_PW}")
    stamp2(a, "MLP0 done")
    vm.wait('ab')
    ex = [V_XT, V_XT + 4]
    lg.issue(f"ds_read_b128 v[{ex[0]}:{ex[0]+3}], v{V_EXR}", ('x', 0))
    V_AL1, V_ALX = V_VA, V_VA + 1
    a(f"v_mov_b32 v{V_AL1}, 0")
    a(f"v_mov_b32 v{V_ALX}, 0")
    a(f"s_mov_b32 s{S_K1}, 0xbf803f80")
    for k in range(8):
        acc = f"v[{V_D}:{V_D+15}]"
        c = "0" if k == 0 else acc
        a(f"v_mfma_f32_32x32x16_bf16 {acc}, v[{V_ABF+4*k}:{V_ABF+4*k+3}], v[{V_C+4*k}:{V_C+4*k+3}], {c}")
        if k < 7:
            e1 = ex[(k + 1) % 2]
            lg.issue(f"ds_read_b128 v[{e1}:{e1+3}], v{V_EXR} offset:{16*(k+1)}", ('x', k + 1))
        lg.wait(('x', k))
        e0 = ex[k % 2]
        for j in range(4):
            a(f"v_dot2_f32_bf16 v{V_PX}, v{V_C+4*k+j}, v{e0+j}, v{V_PX}")
        for j in range(4):
            a(f"v_dot2_f32_bf16 v{V_AL1}, v{V_ABF+4*k+j}, s{S_K1}, v{V_AL1}")
        for j in range(4):
            a(f"v_dot2_f32_bf16 v{V_ALX}, v{e0+j}, s{S_K1}, v{V_ALX}")
    for phi in range(17, 22):
        hload(phi)
    a("s_nop 2")
    half_sum(a, V_PX, V_XT)
    half_sum(a, V_AL1, V_XT)
    half_sum(a, V_ALX, V_XT)
    for g in range(4):
        r = V_D + 4 * g
        if g:
            a(f"v_xor_b32 v{V_XT}, {32*g}, v{V_PW}")
            ad = V_XT
        else:
            ad = V_PW
        lg.issue(f"ds_write_b128 v{ad}, v[{r}:{r+3}]", 'pw')
    tt = V_ABF
    a(f"""
    v_xor_b32 v{tt}, {7*16}, v{V_PW}
    v_lshrrev_b32 v{tt+1}, 5, v1
    v_and_b32 v{tt+2}, 7, v1
    v_and_b32 v{tt+3}, 0xffffff00, v{V_PW}
    v_cndmask_b32 v{V_D}, v{V_D}, v{V_PX}, s[{S_LO}:{S_LO+1}]
    """)
    for g in range(4):
        if g:
            a(f"v_xor_b32 v{tt+4}, {32*g}, v{tt}")
            ad = tt + 4
        else:
            ad = tt
        for i in range(1, 4):
            lg.issue(f"ds_write_b32 v{ad}, v{V_D+4*g+i} offset:{128 + 4*(4-i)}", 'pw')
        a(f"""
        v_sub_u32 v{tt+5}, {8-2*g}, v{tt+1}
        v_and_b32 v{tt+5}, 7, v{tt+5}
        v_xor_b32 v{tt+5}, v{tt+5}, v{tt+2}
        v_lshl_add_u32 v{tt+5}, v{tt+5}, 4, v{tt+3}
        """)
        lg.issue(f"ds_write_b32 v{tt+5}, v{V_D+4*g} offset:128", 'pw')
    sk = a.newlabel("Lalt")
    a(f"""
    s_cmp_ge_u32 s{S_WAVE}, 4
    s_cbranch_scc1 {sk}
    s_lshl_b32 s{S_T0}, s{S_WAVE}, 8
    s_add_u32 s{S_T0}, s{S_T0}, {L_ALT}
    v_and_b32 v{tt+4}, 31, v1
    v_lshl_add_u32 v{tt+5}, v{tt+4}, 2, s{S_T0}
    ds_write_b32 v{tt+5}, v{V_AL1}
    v_cmp_eq_u32 vcc, 0, v{tt+4}
    v_sub_u32 v{tt+4}, 32, v{tt+4}
    v_and_b32 v{tt+4}, 31, v{tt+4}
    v_cndmask_b32 v{V_AL1}, v{V_AL1}, v{V_ALX}, vcc
    v_lshl_add_u32 v{tt+5}, v{tt+4}, 2, s{S_T0}
    ds_write_b32 v{tt+5}, v{V_AL1} offset:128
    """)
    a.label(sk)
    stamp2(a, "DFT done")
    for phi in range(11, 11 + OPT['split']):
        mlp_step(phi)
    a("s_waitcnt lgkmcnt(0)")
    lg.q = []
    a("s_barrier")
    F = V_D
    Y1 = V_XT
    a(f"v_add_u32 v{V_XT+4}, 65536, v{V_FA}")
    for w in range(8):
        lg.issue(f"ds_read_b128 v[{F+4*w}:{F+4*w+3}], v{V_FA} offset:{8192*w}", ('pq', w))
    for w in range(4):
        lg.issue(f"ds_read_b128 v[{F+32+4*w}:{F+32+4*w+3}], v{V_XT+4} offset:{8192*w}", ('m', w))
    lg.wait([('pq', w) for w in range(4)])
    for i in range(4):
        a(f"v_add_f32 v{F+i}, v{F+i}, v{F+4+i}")
        a(f"v_add_f32 v{F+8+i}, v{F+8+i}, v{F+12+i}")
    for i in range(4):
        a(f"v_add_f32 v{F+i}, v{F+i}, v{F+8+i}")
    for w in range(4, 7):
        lg.issue(f"ds_read_b128 v[{F+4*(w-3)}:{F+4*(w-3)+3}], v{V_XT+4} offset:{8192*w}", ('m', w))
    lg.wait([('pq', w) for w in range(4, 8)])
    for i in range(4):
        a(f"v_add_f32 v{F+16+i}, v{F+16+i}, v{F+20+i}")
        a(f"v_add_f32 v{F+24+i}, v{F+24+i}, v{F+28+i}")
    for i in range(4):
        a(f"v_add_f32 v{F+16+i}, v{F+16+i}, v{F+24+i}")
    lg.issue(f"ds_read_b128 v[{F+20}:{F+23}], v{V_XT+4} offset:{8192*7}", ('m', 7))
    vm.wait('v')
    cp, cq = F + 24, F + 25
    a(f"""
    v_accvgpr_read_b32 v{cp}, a{A_CB}
    s_cmp_eq_u32 s{S_KIND}, 0
    s_cselect_b32 s{S_T0}, -1, 0
    s_cselect_b32 s{S_T1}, 0, -1
    v_lshlrev_b32 v{cp}, 16, v{cp}
    v_and_b32 v{cq}, s{S_T1}, v{cp}
    v_and_b32 v{cp}, s{S_T0}, v{cp}
    """)
    for i in range(4):
        a(f"v_fmac_f32 v{F+i}, v{cp}, v{VV[i]}")
        a(f"v_fmac_f32 v{F+16+i}, v{cq}, v{VV[i]}")
    Y0 = F + 28
    for i in range(4):
        a(f"v_fma_f32 v{Y0+i}, -v{V_TAU}, v{F+16+i}, v{F+i}")
        a(f"v_fma_f32 v{Y1+i}, v{V_TAU}, v{F+16+i}, v{F+i}")
    sk = a.newlabel("Lr1024")
    a(f"""
    s_or_b32 s{S_T0}, s{S_R}, s{S_KIND}
    s_or_b32 s{S_T0}, s{S_T0}, s{S_WAVE}
    s_cmp_lg_u32 s{S_T0}, 0
    s_cbranch_scc1 {sk}
    s_waitcnt lgkmcnt(0)
    v_and_b32 v{F}, 15, v1
    v_lshlrev_b32 v{F}, 4, v{F}
    v_add_u32 v{F}, {L_ALT}, v{F}
    ds_read_b128 v[{F+16}:{F+19}], v{F}
    ds_read_b128 v[{F+24}:{F+27}], v{F} offset:256
    s_waitcnt lgkmcnt(0)
    """)
    for i in range(4):
        a(f"v_add_f32 v{VV[i]}, v{VV[i]}, v{F+16+i}")
        a(f"v_add_f32 v{VV[i]}, v{VV[i]}, v{F+24+i}")
    a(f"""
    ds_read_b128 v[{F+16}:{F+19}], v{F} offset:512
    ds_read_b128 v[{F+24}:{F+27}], v{F} offset:768
    s_waitcnt lgkmcnt(0)
    s_mov_b64 exec, 0xffff
    """)
    for i in range(4):
        a(f"v_add_f32 v{VV[i]}, v{VV[i]}, v{F+16+i}")
        a(f"v_add_f32 v{Y1+i}, v{VV[i]}, v{F+24+i}")
    a("s_mov_b64 exec, -1")
    a.label(sk)
    srd_from(a, R_B, P_OUT, 2048 * 1024)
    a(f"s_mov_b32 s{S_K1}, 0xbfb8aa3b")

    def final_math(m, y, axt, voff, tmp):
        tt_, E = tmp, tmp + 1
        bq = tmp + 5
        a(f"v_accvgpr_read_b32 v{bq}, a{A_B2}")
        a(f"v_accvgpr_read_b32 v{bq+1}, a{A_B2+1}")
        a(f"v_accvgpr_read_b32 v{bq+2}, a{axt}")
        a(f"v_accvgpr_read_b32 v{bq+3}, a{axt+1}")
        for i in range(0, 4, 2):
            bf16_round_pair(a, m + i, m + i + 1, tt_)
            bf16_round_pair(a, y + i, y + i + 1, tt_)
        for i in range(4):
            src = bq + i // 2
            if i % 2 == 0:
                a(f"v_lshlrev_b32 v{tt_}, 16, v{src}")
            else:
                a(f"v_and_b32 v{tt_}, 0xffff0000, v{src}")
            a(f"v_add_f32 v{m+i}, v{m+i}, v{tt_}")
        for i in range(0, 4, 2):
            bf16_round_pair(a, m + i, m + i + 1, tt_)
        for i in range(4):
            a(f"v_mul_f32 v{E+i}, s{S_K1}, v{m+i}")
        for i in range(4):
            a(f"v_exp_f32 v{E+i}, v{E+i}")
        for i in range(4):
            a(f"v_add_f32 v{E+i}, 1.0, v{E+i}")
        for i in range(4):
            a(f"v_rcp_f32 v{E+i}, v{E+i}")
        for i in range(4):
            a(f"v_mul_f32 v{m+i}, v{m+i}, v{E+i}")
        for i in range(0, 4, 2):
            bf16_round_pair(a, m + i, m + i + 1, tt_)
        for i in range(4):
            a(f"v_mul_f32 v{y+i}, v{y+i}, v{m+i}")
        for i in range(0, 4, 2):
            bf16_round_pair(a, y + i, y + i + 1, tt_)
        for i in range(4):
            src = bq + 2 + i // 2
            if i % 2 == 0:
                a(f"v_lshlrev_b32 v{tt_}, 16, v{src}")
            else:
                a(f"v_and_b32 v{tt_}, 0xffff0000, v{src}")
            a(f"v_add_f32 v{y+i}, v{y+i}, v{tt_}")
        a(f"v_cvt_pk_bf16_f32 v{E}, v{y}, v{y+1}")
        a(f"v_cvt_pk_bf16_f32 v{E+1}, v{y+2}, v{y+3}")
        vm.issue(f"buffer_store_dwordx2 v[{E}:{E+1}], v{voff}, s[{R_B}:{R_B+3}], 0 offen", 'o')

    a("s_waitcnt lgkmcnt(0)")
    lg.q = []
    M = F + 32
    for i in range(4):
        a(f"v_add_f32 v{M+i}, v{M+i}, v{M+4+i}")
        a(f"v_add_f32 v{M+8+i}, v{M+8+i}, v{M+12+i}")
        a(f"v_add_f32 v{F+4+i}, v{F+4+i}, v{F+8+i}")
        a(f"v_add_f32 v{F+12+i}, v{F+12+i}, v{F+20+i}")
    for i in range(4):
        a(f"v_add_f32 v{M+i}, v{M+i}, v{M+8+i}")
        a(f"v_add_f32 v{F+4+i}, v{F+4+i}, v{F+12+i}")
    for i in range(4):
        a(f"v_add_f32 v{M+i}, v{M+i}, v{F+4+i}")
    final_math(M, Y0, A_XT, V_W0, F + 9)
    stamp2(a, "F0 done")
    for phi in range(11 + OPT['split'], 22):
        mlp_step(phi)
    a("s_barrier")
    V_XT_save = V_XT
    a("s_nop 7")
    a("s_nop 3")
    for ct in range(2):
        for g in range(4):
            r = A_ACC + 16 * ct + 4 * g
            if g:
                a(f"v_xor_b32 v{V_XT+4}, {32*g}, v{V_PW}")
                ad = V_XT + 4
            else:
                ad = V_PW
            a(f"ds_write_b128 v{ad}, a[{r}:{r+3}] offset:{128*ct}")
    a("s_waitcnt lgkmcnt(0)")
    a("s_barrier")
    for w in range(8):
        a(f"ds_read_b128 v[{F+4*w}:{F+4*w+3}], v{V_FA} offset:{8192*w}")
    a("s_waitcnt lgkmcnt(4)")
    for i in range(4):
        a(f"v_add_f32 v{F+i}, v{F+i}, v{F+4+i}")
        a(f"v_add_f32 v{F+8+i}, v{F+8+i}, v{F+12+i}")
    a("s_waitcnt lgkmcnt(0)")
    for i in range(4):
        a(f"v_add_f32 v{F+16+i}, v{F+16+i}, v{F+20+i}")
        a(f"v_add_f32 v{F+24+i}, v{F+24+i}, v{F+28+i}")
    for i in range(4):
        a(f"v_add_f32 v{F+i}, v{F+i}, v{F+8+i}")
        a(f"v_add_f32 v{F+16+i}, v{F+16+i}, v{F+24+i}")
    for i in range(4):
        a(f"v_add_f32 v{F+i}, v{F+i}, v{F+16+i}")
    final_math(F, Y1, A_XT + 2, V_W1, F + 33)
    if OPT['stamp']:
        a(f"s_cmp_lg_u32 s{S_WAVE}, 0")
        a("s_cbranch_scc1 L_END")
        a("s_waitcnt vmcnt(0)")
        stamp(a, "end")
        a(f"s_lshl_b32 s{S_T0}, s2, 6")
        a(f"s_add_u32 s{S_T0}, s{S_T0}, {WS_ST}")
        a("v_mov_b32 v3, 0")
        a("s_mov_b64 exec, 1")
        for i in range(NSTAMP[0]):
            a(f"v_mov_b32 v4, s{S_STAMP+i}")
            a(f"buffer_store_dword v4, v3, s[{R_WS}:{R_WS+3}], s{S_T0} offen offset:{4*i}")
    a.label("L_END")
    a("s_endpgm")


def main(out):
    a = Asm()
    hdr = f"""; generated by gen/gen4.py
; @launch grid=(256,1,1) block=(512,1,1) lds=163840
.amdgcn_target "amdgcn-amd-amdhsa--gfx950"
.text
"""
    gen(a)
    desc = f""".section .rodata,"a"
.p2align 6
.amdhsa_kernel {KNAME}
  .amdhsa_next_free_vgpr 256
  .amdhsa_next_free_sgpr 102
  .amdhsa_accum_offset 128
  .amdhsa_group_segment_fixed_size 0
  .amdhsa_kernarg_size 104
  .amdhsa_user_sgpr_count 2
  .amdhsa_user_sgpr_kernarg_segment_ptr 1
  .amdhsa_system_sgpr_workgroup_id_x 1
.end_amdhsa_kernel
"""
    open(out, "w").write(hdr + a.text() + desc)


if __name__ == "__main__":
    main(sys.argv[1] if len(sys.argv) > 1 else "v4.s")
```
